```python
import torch

def _softmax(x, axis=-1):
    return torch.softmax(x, dim=axis)
def _gelu(x):
    return torch.nn.functional.gelu(x, approximate="tanh")
def _silu(x):
    return torch.nn.functional.silu(x)
def _sigmoid(x):
    return torch.sigmoid(x)
def _layernorm(x, axis=-1, eps=1e-5):
    m = x.mean(dim=axis, keepdim=True)
    v = x.var(dim=axis, keepdim=True, unbiased=False)
    return (x - m) / torch.sqrt(v + eps)
def _scatter_add(tgt, idx, src, axis=0):
    return tgt.clone().index_add_(axis, idx, src)
def _segment_sum(src, seg, n):
    out = torch.zeros((n,) + src.shape[1:], dtype=src.dtype)
    return out.index_add_(0, seg, src)
def _pad(x, pw):
    flat = tuple(v for pair in reversed(pw) for v in pair)
    return torch.nn.functional.pad(x, flat)

kernel_name = 'gated_mix__compressed_kv_cla__glu_gated_reglu__decode'

def setup_inputs():

    _w = (lambda a: (lambda t: t.to(torch.bfloat16) if t.is_floating_point() else t)(torch.as_tensor(a)))
    def _A_setup():
        B, H, Sq, Sk, D, M = 4, 32, 1, 4096, 128, 512
        Dc = 4 * D
        return {
            "x": _w((lambda *s: torch.randn(*s, dtype=torch.bfloat16) * 0.05)(B, Sq, M)),
            "c_kv": _w((lambda *s: torch.randn(*s, dtype=torch.bfloat16) * 0.4)(B, Sk, Dc)),
            "w_q": _w((lambda *s: torch.randn(*s, dtype=torch.bfloat16) * 6.4)(M, H, D) * (M ** -0.5)),
            "w_uk": _w((lambda *s: torch.randn(*s, dtype=torch.bfloat16) * 6.4)(Dc, H, D) * (Dc ** -0.5)),
            "w_uv": _w((lambda *s: torch.randn(*s, dtype=torch.bfloat16) * 0.4)(Dc, H, D) * (Dc ** -0.5)),
            "w_o": _w((lambda *s: torch.randn(*s, dtype=torch.bfloat16) * 0.4)(H, D, M) * ((H * D) ** -0.5)),
        }
    _A_in = _A_setup()

    def _B_setup():
        B, S, D, F = 4, 1, 512, 1792
        return {
            "x": _w((lambda *s: torch.randn(*s, dtype=torch.bfloat16) * 0.05)(B, S, D)),
            "W_gate": _w((lambda *s: torch.randn(*s, dtype=torch.bfloat16) * 0.8)(D, F) * (2.0 / D) ** 0.5),
            "W_up": _w((lambda *s: torch.randn(*s, dtype=torch.bfloat16) * 0.8)(D, F) * (2.0 / D) ** 0.5),
            "W_down": _w((lambda *s: torch.randn(*s, dtype=torch.bfloat16) * 0.8)(F, D) * (1.0 / F) ** 0.5),
        }
    _B_in = _B_setup()

    return {
        "A_x": _A_in["x"],
        "A_c_kv": _A_in["c_kv"],
        "A_w_q": _A_in["w_q"],
        "A_w_uk": _A_in["w_uk"],
        "A_w_uv": _A_in["w_uv"],
        "A_w_o": _A_in["w_o"],
        "B_x": _B_in["x"],
        "B_W_gate": _B_in["W_gate"],
        "B_W_up": _B_in["W_up"],
        "B_W_down": _B_in["W_down"],
        "gate_w": _w((lambda *s: torch.randn(*s, dtype=torch.bfloat16) * 0.05)(512) * 16.0),
    }

def reference(A_x, A_c_kv, A_w_q, A_w_uk, A_w_uv, A_w_o, B_x, B_W_gate, B_W_up, B_W_down, gate_w):
    def _A_ref(x, c_kv, w_q, w_uk, w_uv, w_o):
        B, Sq, M = x.shape[0], x.shape[1], x.shape[2]
        Sk = c_kv.shape[1]
        H, D = w_q.shape[1], w_q.shape[2]
        q = torch.einsum("bqm,mhd->bhqd", x, w_q)
        k = torch.einsum("bkc,chd->bhkd", c_kv, w_uk)
        v = torch.einsum("bkc,chd->bhkd", c_kv, w_uv)
        scores = torch.einsum("bhqd,bhkd->bhqk", q, k) * (D ** -0.5)
        off = Sk - Sq
        qi = torch.arange(Sq)[:, None]
        kj = torch.arange(Sk)[None, :]
        cmask = kj <= (qi + off)
        scores = torch.where(cmask[None, None], scores, -1e9)
        p = _softmax(scores, axis=-1)
        ctx = torch.einsum("bhqk,bhkd->bhqd", p, v)
        return torch.einsum("bhqd,hdm->bqm", ctx, w_o)

    def _B_ref(x, W_gate, W_up, W_down):
        gate = torch.einsum("bsd,df->bsf", x, W_gate)
        up = torch.einsum("bsd,df->bsf", x, W_up)
        gate = gate * (lambda x, dt: x.to(dt))(gate > 0, gate.dtype)
        h = gate * up
        return torch.einsum("bsf,fd->bsd", h, W_down)

    x = A_x
    g = _sigmoid((x * gate_w).sum(-1, keepdims=True))
    a = _A_ref(x, A_c_kv, A_w_q, A_w_uk, A_w_uv, A_w_o)
    b = _B_ref(x, B_W_gate, B_W_up, B_W_down)
    return g * a + (1 - g) * b
```

```python
def more(G):
    e,lab,srd,prologue,desc,head,L = G.e,G.lab,G.srd,G.prologue,G.desc,G.head,G.L
    QP,GU,PART,STM,STL,OUTP,WS_END = G.QP,G.GU,G.PART,G.STM,G.STL,G.OUTP,G.WS_END
    def f(i): return ((i&7)<<1)|(i>>3)
    def tr_addr(dst, rowshift, t1,t2,t3):
        e(f"v_lshrrev_b32 v{t1}, 2, v4")
        e(f"v_lshl_add_u32 v{t1}, v3, 2, v{t1}")
        e(f"v_and_b32 v{t2}, 7, v{t1}"); e(f"v_lshlrev_b32 v{t2}, 1, v{t2}")
        e(f"v_lshrrev_b32 v{t3}, 3, v{t1}"); e(f"v_or_b32 v{t2}, v{t2}, v{t3}")
        e(f"v_bfe_u32 v{t3}, v4, 1, 1"); e(f"v_xor_b32 v{t2}, v{t2}, v{t3}")
        e(f"v_lshlrev_b32 v{dst}, {rowshift}, v{t1}")
        e(f"v_lshl_add_u32 v{dst}, v{t2}, 4, v{dst}")
        e(f"v_and_b32 v{t3}, 1, v4"); e(f"v_lshl_add_u32 v{dst}, v{t3}, 3, v{dst}")
    def bfly(v, tmp, addr, op):
        for k in (1,2,4,8,16,32):
            e(f"v_xor_b32 v{addr}, {k}, v1"); e(f"v_lshlrev_b32 v{addr}, 2, v{addr}")
            e(f"ds_bpermute_b32 v{tmp}, v{addr}, v{v}"); e("s_waitcnt lgkmcnt(0)")
            e(f"{op} v{v}, v{v}, v{tmp}")
    def rbf(v):
        e(f"v_cvt_pk_bf16_f32 v{v}, v{v}, v{v}"); e(f"v_lshlrev_b32 v{v}, 16, v{v}")

    def k2():
        n="k2_kernel"; head(n)
        e("s_cmp_ge_u32 s2, 256"); e("s_cbranch_scc1 K2_END")
        e("s_load_dwordx2 s[4:5], s[0:1], 8"); e("s_load_dwordx2 s[16:17], s[0:1], 104")
        prologue()
        e("s_waitcnt lgkmcnt(0)")
        srd(20,4,16777216); srd(32,16,WS_END)
        e("s_lshr_b32 s40, s2, 6"); e("s_and_b32 s41, s2, 63")
        e("s_lshl_b32 s42, s2, 16"); e("s_lshl_b32 s43, s3, 14"); e("s_add_u32 s42, s42, s43")
        for i in range(16):
            e(f"v_xor_b32 v8, {f(i)}, v1"); e("v_lshlrev_b32 v8, 4, v8")
            e(f"s_add_u32 m0, s43, {i*1024}"); e("s_nop 0")
            e("buffer_load_dwordx4 v8, s[20:23], s42 offen lds")
            e("s_add_u32 s42, s42, 1024")
        e("v_lshlrev_b32 v9, 4, v0")
        e("s_lshl_b32 s44, s40, 16"); e("s_add_u32 s45, s44, 0x40000")
        for i in range(16):
            e(f"buffer_load_dwordx4 v[{64+8*i}:{67+8*i}], v9, s[32:35], s44 offen")
            e(f"buffer_load_dwordx4 v[{68+8*i}:{71+8*i}], v9, s[32:35], s45 offen")
            e("s_add_u32 s44, s44, 4096"); e("s_add_u32 s45, s45, 4096")
        e("v_lshrrev_b32 v10, 7, v0"); e("v_mul_u32_u24 v10, 1040, v10")
        e("v_and_b32 v11, 127, v0"); e("v_lshl_add_u32 v10, v11, 3, v10"); e("v_add_u32 v10, 0x10000, v10")
        for i in range(16):
            e(f"s_waitcnt vmcnt({30-2*i})")
            b=64+8*i
            for r in range(4): e(f"v_add_f32 v{b+r}, v{b+r}, v{b+4+r}")
            e(f"v_cvt_pk_bf16_f32 v{b}, v{b}, v{b+1}"); e(f"v_cvt_pk_bf16_f32 v{b+1}, v{b+2}, v{b+3}")
            e(f"ds_write_b64 v10, v[{b}:{b+1}] offset:{i*2080}")
        e("v_and_b32 v12, 7, v4"); e("v_lshlrev_b32 v12, 1, v12"); e("v_lshrrev_b32 v13, 3, v4"); e("v_or_b32 v12, v12, v13")
        e("v_lshlrev_b32 v13, 10, v4"); e("v_add_u32 v13, s43, v13")
        for s4 in range(4):
            e(f"v_add_u32 v14, {4*s4}, v3"); e("v_xor_b32 v14, v14, v12"); e(f"v_lshl_add_u32 v{16+s4}, v14, 4, v13")
        e("v_mul_u32_u24 v20, 1040, v4"); e("v_lshl_add_u32 v20, v3, 4, v20"); e("v_add_u32 v20, 0x10000, v20")
        for r in range(8): e(f"v_mov_b32 v{24+r}, 0")
        e("s_waitcnt vmcnt(0) lgkmcnt(0)"); e("s_barrier")
        for s in range(16):
            b=32+12*(s&1)
            e(f"ds_read_b128 v[{b}:{b+3}], v{16+(s&3)} offset:{(s>>2)*256}")
            e(f"ds_read_b128 v[{b+4}:{b+7}], v20 offset:{s*64}")
            e(f"ds_read_b128 v[{b+8}:{b+11}], v20 offset:{s*64+16640}")
            e("s_waitcnt lgkmcnt(0)")
            e(f"v_mfma_f32_16x16x32_bf16 v[24:27], v[{b}:{b+3}], v[{b+4}:{b+7}], v[24:27]")
            e(f"v_mfma_f32_16x16x32_bf16 v[28:31], v[{b}:{b+3}], v[{b+8}:{b+11}], v[28:31]")
        e("s_nop 7"); e("s_nop 3")
        e("v_mov_b32 v21, s3"); e("v_lshl_add_u32 v21, v21, 2, v3"); e("v_lshlrev_b32 v21, 2, v21")
        e("v_lshl_add_u32 v21, v4, 6, v21"); e("v_add_u32 v21, 0x18200, v21")
        e("v_lshlrev_b32 v22, 6, v4"); e("v_add_u32 v22, 0x18200, v22")
        for ht in range(2):
            a=24+4*ht
            e(f"v_max_f32 v32, v{a}, v{a+1}"); e(f"v_max3_f32 v32, v32, v{a+2}, v{a+3}")
            e(f"ds_write_b32 v21, v32 offset:{ht*1024}")
        e("s_waitcnt lgkmcnt(0)"); e("s_barrier")
        e("s_mov_b32 s46, 0x3e0293ee")
        e("s_lshr_b32 s47, s3, 1"); e("s_lshl_b32 s47, s47, 6"); e("s_and_b32 s48, s3, 1"); e("s_lshl_b32 s48, s48, 3"); e("s_add_u32 s47, s47, s48")
        e("v_mul_u32_u24 v23, 144, v4"); e("v_lshl_add_u32 v23, v3, 4, v23"); e("v_add_u32 v23, s47, v23"); e("v_add_u32 v23, 0x19200, v23")
        for ht in range(2):
            a=24+4*ht
            for k in range(4): e(f"ds_read_b128 v[{32+4*k}:{35+4*k}], v22 offset:{ht*1024+k*16}")
            e("s_waitcnt lgkmcnt(0)")
            e("v_max3_f32 v32, v32, v33, v34")
            for k in range(35,47,2): e(f"v_max3_f32 v32, v32, v{k}, v{k+1}")
            e("v_max_f32 v32, v32, v47")
            e(f"v_mul_f32 v{56+ht}, s46, v32")
            for i in range(4):
                e(f"v_fma_f32 v{a+i}, v{a+i}, s46, -v{56+ht}"); e(f"v_exp_f32 v{a+i}, v{a+i}")
            e("s_nop 0")
            e(f"v_add_f32 v33, v{a}, v{a+1}"); e(f"v_add_f32 v34, v{a+2}, v{a+3}"); e("v_add_f32 v33, v33, v34")
            e(f"ds_write_b32 v21, v33 offset:{2048+ht*1024}")
            e(f"v_cvt_pk_bf16_f32 v34, v{a}, v{a+1}"); e(f"v_cvt_pk_bf16_f32 v35, v{a+2}, v{a+3}")
            e(f"ds_write_b64 v23, v[34:35] offset:{ht*2304}")
        e("s_waitcnt lgkmcnt(0)"); e("s_barrier")
        e("s_cmp_lg_u32 s3, 0"); e("s_cbranch_scc1 K2_PV")
        e("v_cmp_gt_u32 vcc, 16, v1"); e("s_and_saveexec_b64 s[60:61], vcc")
        e("v_lshlrev_b32 v48, 10, v4")
        e("s_lshl_b32 s47, s40, 8"); e("s_lshl_b32 s48, s41, 2"); e("s_add_u32 s47, s47, s48")
        e(f"s_add_u32 s48, s47, {STM}"); e(f"s_add_u32 s49, s47, {STL}")
        for ht in range(2):
            for k in range(4): e(f"ds_read_b128 v[{32+4*k}:{35+4*k}], v22 offset:{2048+ht*1024+k*16}")
            e("s_waitcnt lgkmcnt(0)")
            for k in range(33,48): e(f"v_add_f32 v32, v32, v{k}")
            e(f"buffer_store_dword v{56+ht}, v48, s[32:35], s48 offen")
            e(f"buffer_store_dword v32, v48, s[32:35], s49 offen")
            e("s_add_u32 s48, s48, 16384"); e("s_add_u32 s49, s49, 16384")
        e("s_mov_b64 exec, s[60:61]")
        lab("K2_PV")
        e("v_mul_u32_u24 v23, 144, v4"); e("v_lshl_add_u32 v23, v3, 4, v23"); e("v_add_u32 v23, 0x19200, v23")
        for ht in range(2):
            for ks in range(2): e(f"ds_read_b128 v[{32+8*ht+4*ks}:{35+8*ht+4*ks}], v23 offset:{ht*2304+ks*64}")
        tr_addr(48,10,49,50,51)
        e("s_lshl_b32 s47, s3, 8"); e("v_add_u32 v48, s47, v48")
        e("v_lshlrev_b32 v49, 18, v4"); e("v_lshl_add_u32 v49, v3, 3, v49")
        e("s_lshl_b32 s47, s40, 13"); e("s_lshl_b32 s48, s41, 7"); e("s_add_u32 s47, s47, s48")
        e("s_lshl_b32 s48, s3, 16"); e("s_add_u32 s47, s47, s48"); e(f"s_add_u32 s47, s47, {PART}")
        e("s_add_u32 s48, s47, 0x400000")
        for ct in range(8):
            e(f"v_xor_b32 v50, {ct*32}, v48")
            for ks in range(2):
                e(f"ds_read_b64_tr_b16 v[{52+4*ks}:{53+4*ks}], v50 offset:{ks*32768}")
                e(f"ds_read_b64_tr_b16 v[{54+4*ks}:{55+4*ks}], v50 offset:{ks*32768+16384}")
            e("s_waitcnt lgkmcnt(0)")
            for ht in range(2):
                a=64+8*(ct&1)+4*ht
                e(f"v_mfma_f32_16x16x32_bf16 v[{a}:{a+3}], v[52:55], v[{32+8*ht}:{35+8*ht}], 0")
                e(f"v_mfma_f32_16x16x32_bf16 v[{a}:{a+3}], v[56:59], v[{36+8*ht}:{39+8*ht}], v[{a}:{a+3}]")
            e("s_nop 7"); e("s_nop 3")
            for ht in range(2):
                a=64+8*(ct&1)+4*ht
                e(f"v_cvt_pk_bf16_f32 v{a}, v{a}, v{a+1}"); e(f"v_cvt_pk_bf16_f32 v{a+1}, v{a+2}, v{a+3}")
                e(f"buffer_store_dwordx2 v[{a}:{a+1}], v49, s[32:35], s{47+ht} offen offset:{(ct&3)*32}")
            if ct==3:
                e("s_add_u32 s47, s47, 0x8000"); e("s_add_u32 s48, s48, 0x8000")
        lab("K2_END"); e("s_endpgm")
        L.append(desc(n,192))

    def k3():
        n="k3_kernel"; head(n)
        e("s_cmp_ge_u32 s2, 270"); e("s_cbranch_scc1 K3_END")
        e("s_load_dwordx4 s[4:7], s[0:1], 32")
        e("s_load_dwordx2 s[8:9], s[0:1], 72")
        e("s_load_dwordx2 s[16:17], s[0:1], 104")
        prologue()
        e("s_waitcnt lgkmcnt(0)")
        srd(20,4,4194304); srd(32,16,WS_END)
        e("s_and_b32 s40, s2, 31"); e("s_lshr_b32 s41, s2, 5")
        e("s_sub_u32 s42, s2, 256"); e("s_mov_b32 s11, 4194304")
        e("s_cmp_ge_u32 s2, 256")
        e("s_cselect_b32 s6, s8, s6"); e("s_cselect_b32 s7, s9, s7")
        e("s_cselect_b32 s10, 1835008, s11"); e("s_cselect_b32 s42, s42, s40")
        e("s_mov_b32 s24, s6"); e("s_and_b32 s25, s7, 0xffff"); e("s_mov_b32 s26, s10"); e("s_mov_b32 s27, 0x00020000")
        e("s_lshl_b32 s42, s42, 17"); e("s_lshl_b32 s43, s3, 15"); e("s_add_u32 s42, s42, s43")
        for i in range(32):
            e(f"v_xor_b32 v8, {f(i&15)}, v1"); e("v_lshlrev_b32 v8, 4, v8")
            e(f"s_add_u32 m0, s43, {i*1024}"); e("s_nop 0")
            e("buffer_load_dwordx4 v8, s[24:27], s42 offen lds")
            e("s_add_u32 s42, s42, 1024")
        e("s_cmp_ge_u32 s2, 256"); e("s_cbranch_scc1 K3_MLP")
        e("s_lshl_b32 s42, s41, 19"); e("s_lshl_b32 s44, s40, 8"); e("s_add_u32 s42, s42, s44")
        e("s_lshl_b32 s44, s3, 17"); e("s_add_u32 s42, s42, s44")
        e("s_lshl_b32 s43, s3, 12"); e("s_add_u32 s43, s43, 0x20000")
        for i in range(4):
            e(f"v_add_u32 v8, {4*i}, v3")
            e("v_and_b32 v9, 7, v8"); e("v_lshlrev_b32 v9, 1, v9"); e("v_lshrrev_b32 v10, 3, v8"); e("v_or_b32 v9, v9, v10")
            e("v_xor_b32 v9, v9, v4"); e("v_lshlrev_b32 v9, 4, v9"); e("v_lshl_add_u32 v9, v8, 13, v9")
            e(f"s_add_u32 m0, s43, {i*1024}"); e("s_nop 0")
            e("buffer_load_dwordx4 v9, s[20:23], s42 offen lds")
        e("v_lshrrev_b32 v10, 5, v1"); e("v_lshlrev_b32 v10, 12, v10"); e("v_and_b32 v11, 31, v1"); e("v_lshl_add_u32 v10, v11, 2, v10")
        e("s_lshl_b32 s44, s40, 3"); e("s_add_u32 s44, s44, s41"); e("s_lshl_b32 s44, s44, 2"); e("s_add_u32 s44, s44, s3")
        e("s_lshl_b32 s44, s44, 13"); e(f"s_add_u32 s44, s44, {PART}")
        for j in range(32): e(f"buffer_load_dword v{64+j}, v10, s[32:35], s44 offen offset:{j*128}")
        e("v_lshlrev_b32 v12, 2, v1")
        e("s_lshl_b32 s44, s40, 10"); e("s_lshl_b32 s45, s3, 8"); e("s_add_u32 s44, s44, s45")
        e(f"s_add_u32 s45, s44, {STM}"); e(f"s_add_u32 s44, s44, {STL}")
        e("buffer_load_dword v13, v12, s[32:35], s45 offen"); e("buffer_load_dword v14, v12, s[32:35], s44 offen")
        e("s_waitcnt vmcnt(0)")
        e("v_mov_b32 v15, v13"); bfly(15,16,17,"v_max_f32")
        e("v_sub_f32 v13, v13, v15"); e("v_exp_f32 v13, v13"); e("s_nop 0")
        e("v_mul_f32 v14, v14, v13"); bfly(14,16,17,"v_add_f32")
        e("v_rcp_f32 v14, v14"); e("s_nop 0"); e("v_mul_f32 v13, v13, v14")
        e("s_lshl_b32 s44, s3, 8"); e("s_add_u32 s44, s44, 0x24000")
        e("v_add_u32 v12, s44, v12"); e("ds_write_b32 v12, v13")
        e("v_lshrrev_b32 v12, 5, v1"); e("v_lshlrev_b32 v12, 7, v12"); e("v_add_u32 v12, s44, v12")
        e("s_waitcnt lgkmcnt(0)")
        for k in range(8): e(f"ds_read_b128 v[{96+4*k}:{99+4*k}], v12 offset:{k*16}")
        e("v_mov_b32 v20, 0"); e("v_mov_b32 v21, 0")
        e("s_waitcnt lgkmcnt(0)")
        for j in range(32):
            e(f"v_lshlrev_b32 v22, 16, v{64+j}"); e(f"v_and_b32 v23, 0xffff0000, v{64+j}")
            e(f"v_fmac_f32 v20, v22, v{96+j}"); e(f"v_fmac_f32 v21, v23, v{96+j}")
        e("v_xor_b32 v17, 32, v1"); e("v_lshlrev_b32 v17, 2, v17")
        e("ds_bpermute_b32 v22, v17, v20"); e("ds_bpermute_b32 v23, v17, v21"); e("s_waitcnt lgkmcnt(0)")
        e("v_add_f32 v20, v20, v22"); e("v_add_f32 v21, v21, v23")
        e("v_cvt_pk_bf16_f32 v20, v20, v21")
        e("v_and_b32 v11, 31, v1")
        e("v_lshrrev_b32 v12, 4, v11"); e("v_lshlrev_b32 v12, 6, v12")
        e("v_bfe_u32 v13, v11, 1, 2"); e("v_lshl_add_u32 v12, v13, 4, v12")
        e("v_bfe_u32 v13, v11, 3, 1"); e("v_lshl_add_u32 v12, v13, 3, v12")
        e("v_and_b32 v13, 1, v11"); e("v_lshl_add_u32 v12, v13, 2, v12")
        e("s_lshl_b32 s44, s3, 7"); e("s_add_u32 s44, s44, 0x24400"); e("v_add_u32 v12, s44, v12")
        e("ds_write_b32 v12, v20")
        e("s_waitcnt vmcnt(0) lgkmcnt(0)"); e("s_barrier")
        e("v_and_b32 v12, 3, v4"); e("v_lshlrev_b32 v12, 7, v12"); e("v_lshl_add_u32 v12, v3, 4, v12"); e("v_add_u32 v12, 0x24400, v12")
        e("ds_read_b128 v[24:27], v12"); e("ds_read_b128 v[28:31], v12 offset:64")
        tr_addr(13,8,14,15,16)
        e("v_add_u32 v13, 0x20000, v13")
        e("s_lshl_b32 s44, s3, 6"); e("v_xor_b32 v13, s44, v13")
        e("v_lshrrev_b32 v14, 2, v4"); e("v_lshlrev_b32 v14, 4, v14"); e("v_and_b32 v15, 3, v4"); e("v_lshl_add_u32 v14, v15, 1, v14")
        e("s_add_u32 s44, s44, 0x24600"); e("v_add_u32 v14, s44, v14")
        for u in range(2):
            e(f"v_xor_b32 v16, {u*32}, v13")
            for ks in range(2):
                e(f"ds_read_b64_tr_b16 v[{32+4*ks}:{33+4*ks}], v16 offset:{ks*8192}")
                e(f"ds_read_b64_tr_b16 v[{34+4*ks}:{35+4*ks}], v16 offset:{ks*8192+4096}")
            e("s_waitcnt lgkmcnt(0)")
            a=40+4*u
            e(f"v_mfma_f32_16x16x32_bf16 v[{a}:{a+3}], v[24:27], v[32:35], 0")
            e(f"v_mfma_f32_16x16x32_bf16 v[{a}:{a+3}], v[28:31], v[36:39], v[{a}:{a+3}]")
        e("s_nop 7"); e("s_nop 3")
        e("v_cmp_gt_u32 vcc, 16, v1"); e("s_and_saveexec_b64 s[60:61], vcc")
        for u in range(2):
            for i in range(4):
                a=40+4*u+i
                e(f"v_cvt_pk_bf16_f32 v{a}, v{a}, v{a}")
                e(f"ds_write_b16 v14, v{a} offset:{i*256+u*8}")
        e("s_mov_b64 exec, s[60:61]")
        e("s_branch K3_M2")
        lab("K3_MLP")
        e("v_lshlrev_b32 v10, 3, v1")
        e("s_mul_i32 s44, s3, 7168"); e("s_sub_u32 s45, s2, 256"); e("s_lshl_b32 s45, s45, 9"); e("s_add_u32 s44, s44, s45")
        e(f"s_add_u32 s44, s44, {GU}"); e("s_add_u32 s45, s44, 28672")
        e("buffer_load_dwordx2 v[20:21], v10, s[32:35], s44 offen"); e("buffer_load_dwordx2 v[22:23], v10, s[32:35], s45 offen")
        e("v_lshrrev_b32 v12, 4, v1"); e("v_lshlrev_b32 v12, 6, v12")
        e("v_bfe_u32 v13, v1, 1, 2"); e("v_lshl_add_u32 v12, v13, 4, v12")
        e("v_bfe_u32 v13, v1, 3, 1"); e("v_lshl_add_u32 v12, v13, 3, v12")
        e("v_and_b32 v13, 1, v1"); e("v_lshl_add_u32 v12, v13, 2, v12")
        e("s_lshl_b32 s44, s3, 8"); e("s_add_u32 s44, s44, 0x24600"); e("v_add_u32 v12, s44, v12")
        e("s_waitcnt vmcnt(0)")
        for r in range(20,24): rbf(r)
        e("v_max_f32 v20, 0, v20"); e("v_max_f32 v21, 0, v21")
        e("v_mul_f32 v20, v20, v22"); e("v_mul_f32 v21, v21, v23")
        e("v_cvt_pk_bf16_f32 v20, v20, v21"); e("ds_write_b32 v12, v20")
        lab("K3_M2")
        e("s_waitcnt vmcnt(0) lgkmcnt(0)"); e("s_barrier")
        e("v_and_b32 v12, 3, v4"); e("v_lshlrev_b32 v12, 8, v12"); e("v_lshl_add_u32 v12, v3, 4, v12"); e("v_add_u32 v12, 0x24600, v12")
        for ks in range(4): e(f"ds_read_b128 v[{24+4*ks}:{27+4*ks}], v12 offset:{ks*64}")
        tr_addr(13,10,14,15,16)
        e("s_lshl_b32 s44, s3, 8"); e("v_add_u32 v13, s44, v13")
        e("v_lshlrev_b32 v18, 2, v1")
        e("s_lshl_b32 s45, s2, 13"); e("s_lshl_b32 s46, s3, 9"); e("s_add_u32 s45, s45, s46"); e(f"s_add_u32 s45, s45, {OUTP}")
        e("v_cmp_gt_u32 vcc, 16, v1")
        for nt in range(8):
            e(f"v_xor_b32 v16, {nt*32}, v13"); e("v_add_u32 v17, 0x10000, v16")
            for ks in range(4):
                ad = 16 if ks<2 else 17
                e(f"ds_read_b64_tr_b16 v[{48+4*ks}:{49+4*ks}], v{ad} offset:{(ks&1)*32768}")
                e(f"ds_read_b64_tr_b16 v[{50+4*ks}:{51+4*ks}], v{ad} offset:{(ks&1)*32768+16384}")
            e("s_waitcnt lgkmcnt(0)")
            a=64+4*(nt&1)
            for ks in range(4):
                c = "0" if ks==0 else f"v[{a}:{a+3}]"
                e(f"v_mfma_f32_16x16x32_bf16 v[{a}:{a+3}], v[{24+4*ks}:{27+4*ks}], v[{48+4*ks}:{51+4*ks}], {c}")
            e("s_nop 7"); e("s_nop 3")
            e("s_and_saveexec_b64 s[60:61], vcc")
            for i in range(4): e(f"buffer_store_dword v{a+i}, v18, s[32:35], s45 offen offset:{i*0+nt*64}") if i==0 else None
            for i in range(1,4):
                pass
            e("s_mov_b64 exec, s[60:61]")
            L.pop(); L.pop()
            for i in range(4):
                e(f"s_add_u32 s46, s45, {i*2048}")
                e(f"buffer_store_dword v{a+i}, v18, s[32:35], s46 offen offset:{nt*64}")
            e("s_mov_b64 exec, s[60:61]")
        lab("K3_END"); e("s_endpgm")
        L.append(desc(n,128))

    def k4():
        n="k4_kernel"; head(n)
        e("s_cmp_ge_u32 s2, 32"); e("s_cbranch_scc1 K4_END")
        e("s_load_dwordx2 s[4:5], s[0:1], 0"); e("s_load_dwordx4 s[8:11], s[0:1], 80"); e("s_load_dwordx2 s[16:17], s[0:1], 104")
        prologue()
        e("s_waitcnt lgkmcnt(0)")
        srd(20,4,4096); srd(24,8,1024); srd(28,10,4096); srd(32,16,OUTP+270*8192)
        e("s_lshr_b32 s40, s2, 3"); e("s_and_b32 s41, s2, 7")
        e("v_lshlrev_b32 v8, 2, v1")
        e("s_lshl_b32 s42, s40, 11"); e("s_lshl_b32 s43, s41, 8"); e("s_add_u32 s42, s42, s43")
        e("s_lshl_b32 s43, s3, 13"); e("s_add_u32 s42, s42, s43"); e(f"s_add_u32 s42, s42, {OUTP}")
        for i in range(68):
            e(f"buffer_load_dword v{32+i}, v8, s[32:35], s42 offen"); e("s_add_u32 s42, s42, 32768")
        e("v_lshlrev_b32 v9, 4, v1"); e("s_lshl_b32 s43, s40, 10")
        e("buffer_load_dwordx4 v[12:15], v9, s[20:23], s43 offen"); e("buffer_load_dwordx4 v[16:19], v9, s[24:27], 0 offen")
        e("s_waitcnt vmcnt(2)")
        for i in range(1,64): e(f"v_add_f32 v32, v32, v{32+i}")
        for i in range(97,100): e(f"v_add_f32 v96, v96, v{i}")
        e("v_lshlrev_b32 v10, 2, v0"); e("ds_write_b32 v10, v32"); e("ds_write_b32 v10, v96 offset:1024")
        e("s_waitcnt vmcnt(0) lgkmcnt(0)"); e("s_barrier")
        e("s_cmp_lg_u32 s3, 0"); e("s_cbranch_scc1 K4_END")
        e("v_mov_b32 v20, 0")
        for r in range(4):
            e(f"v_lshlrev_b32 v21, 16, v{12+r}"); e(f"v_lshlrev_b32 v22, 16, v{16+r}"); e("v_mul_f32 v21, v21, v22"); rbf(21); e("v_add_f32 v20, v20, v21")
            e(f"v_and_b32 v21, 0xffff0000, v{12+r}"); e(f"v_and_b32 v22, 0xffff0000, v{16+r}"); e("v_mul_f32 v21, v21, v22"); rbf(21); e("v_add_f32 v20, v20, v21")
        bfly(20,21,22,"v_add_f32")
        rbf(20)
        e("v_mul_f32 v20, 0xbfb8aa3b, v20"); e("v_exp_f32 v20, v20"); e("s_nop 0"); e("v_add_f32 v20, 1.0, v20"); e("v_rcp_f32 v20, v20"); e("s_nop 0")
        rbf(20)
        e("v_sub_f32 v21, 1.0, v20"); rbf(21)
        for k in range(4):
            e(f"ds_read_b32 v{24+k}, v8 offset:{k*256}"); e(f"ds_read_b32 v{28+k}, v8 offset:{1024+k*256}")
        e("s_waitcnt lgkmcnt(0)")
        for k in range(1,4):
            e(f"v_add_f32 v24, v24, v{24+k}"); e(f"v_add_f32 v28, v28, v{28+k}")
        rbf(24); rbf(28)
        e("v_mul_f32 v24, v20, v24"); rbf(24); e("v_mul_f32 v28, v21, v28"); rbf(28)
        e("v_add_f32 v24, v24, v28"); e("v_cvt_pk_bf16_f32 v24, v24, v24")
        e("v_lshlrev_b32 v9, 1, v1"); e("s_lshl_b32 s42, s2, 7")
        e("buffer_store_short v24, v9, s[28:31], s42 offen")
        lab("K4_END"); e("s_endpgm")
        L.append(desc(n,104))
    return [("k2_kernel",k2,(256,1,1),256,107520),("k3_kernel",k3,(270,1,1),256,150016),("k4_kernel",k4,(32,1,1),256,2048)]
```

```python
import sys
NAME = "gated_mix__compressed_kv_cla__glu_gated_reglu__decode"
QP=0; GU=0x80000; PART=0x100000; STM=0xA00000; STL=0xA08000; OUTP=0xA20000; WS_END=0xD00000
L=[]
def e(s): L.append("    "+s)
def lab(s): L.append(s+":")

def srd(d, ptr, size):
    e(f"s_mov_b32 s{d}, s{ptr}"); e(f"s_and_b32 s{d+1}, s{ptr+1}, 0xffff")
    e(f"s_mov_b32 s{d+2}, {size}"); e(f"s_mov_b32 s{d+3}, 0x00020000")

def prologue():
    e("v_and_b32 v1, 63, v0")
    e("v_lshrrev_b32 v2, 6, v0")
    e("s_nop 0")
    e("v_readfirstlane_b32 s3, v2")
    e("v_lshrrev_b32 v3, 4, v1")
    e("v_and_b32 v4, 15, v1")

def desc(name, vg, sg=96):
    vg=(vg+3)//4*4
    return f""".section .rodata,"a"
.p2align 6
.amdhsa_kernel {name}
  .amdhsa_next_free_vgpr {vg}
  .amdhsa_next_free_sgpr {sg}
  .amdhsa_accum_offset {vg}
  .amdhsa_group_segment_fixed_size 0
  .amdhsa_kernarg_size 112
  .amdhsa_user_sgpr_count 2
  .amdhsa_user_sgpr_kernarg_segment_ptr 1
  .amdhsa_system_sgpr_workgroup_id_x 1
.end_amdhsa_kernel
.text"""
def head(name):
    L.append(f".globl {name}\n.p2align 8\n.type {name},@function\n{name}:")

def k1():
    n="k1_kernel"; head(n)
    e("s_cmp_ge_u32 s2, 120"); e("s_cbranch_scc1 K1_END")
    e("s_load_dwordx2 s[4:5], s[0:1], 0")
    e("s_load_dwordx4 s[8:11], s[0:1], 16")
    e("s_load_dwordx4 s[12:15], s[0:1], 56")
    e("s_load_dwordx2 s[16:17], s[0:1], 104")
    prologue()
    e("s_waitcnt lgkmcnt(0)")
    srd(20,4,4096)
    srd(28,10,4194304)
    srd(32,16,WS_END)
    e("s_cmp_ge_u32 s2, 64"); e("s_cbranch_scc1 K1_MLP")
    e("s_and_b32 s42, s2, 31"); e("s_lshr_b32 s43, s2, 5")
    srd(24,8,4194304)
    e("s_movk_i32 s40, 8192")
    e("s_lshl_b32 s41, s42, 8"); e("s_lshl_b32 s44, s43, 7"); e("s_add_u32 s41, s41, s44")
    e("s_branch K1_GO")
    lab("K1_MLP")
    e("s_sub_u32 s44, s2, 64")
    e("s_cmp_ge_u32 s44, 28"); e("s_cselect_b32 s45, 1, 0")
    e("s_cselect_b32 s46, 28, 0"); e("s_sub_u32 s44, s44, s46")
    e("s_cmp_eq_u32 s45, 1")
    e("s_cselect_b32 s8, s14, s12"); e("s_cselect_b32 s9, s15, s13")
    srd(24,8,1835008)
    e("s_movk_i32 s40, 3584")
    e("s_lshl_b32 s41, s44, 7")
    lab("K1_GO")
    e("v_lshrrev_b32 v5, 3, v1")
    e("v_and_b32 v6, 7, v1")
    e("v_and_b32 v7, 2, v5")
    e("v_xor_b32 v6, v6, v7")
    e("v_mul_lo_u32 v8, v5, s40")
    e("v_lshl_add_u32 v8, v6, 4, v8")
    e("v_add_u32 v8, s41, v8")
    e("v_xor_b32 v6, 4, v6")
    e("s_lshl_b32 s47, s40, 3")
    e("v_mul_lo_u32 v9, v5, s40")
    e("v_lshl_add_u32 v9, v6, 4, v9")
    e("v_add_u32 v9, s41, v9")
    e("v_add_u32 v9, s47, v9")
    e("s_lshl_b32 s48, s40, 4")
    e("s_lshl_b32 s49, s3, 3"); e("s_mul_i32 s49, s49, s48")
    e("s_lshl_b32 s50, s3, 14")
    for i in range(16):
        e(f"s_add_u32 m0, s50, {i*1024}")
        e("s_nop 0")
        e(f"buffer_load_dwordx4 v{8+(i&1)}, s[24:27], s49 offen lds")
        if i&1: e("s_add_u32 s49, s49, s48")
    e("v_and_b32 v10, 3, v1"); e("v_lshlrev_b32 v10, 10, v10"); e("v_lshl_add_u32 v10, v3, 4, v10")
    for s in range(16):
        e(f"buffer_load_dwordx4 v[{64+4*s}:{67+4*s}], v10, s[20:23], 0 offen offset:{s*64}")
    e("s_cmp_ge_u32 s2, 64"); e("s_cbranch_scc1 K1_NOUK")
    e("v_lshlrev_b32 v11, 13, v4")
    e("v_lshl_add_u32 v11, v3, 4, v11")
    e("v_add_u32 v11, s41, v11")
    e("s_lshl_b32 s51, s3, 20")
    for ct in range(8):
        for s in range(2):
            e(f"buffer_load_dwordx4 v[{128+8*ct+4*s}:{131+8*ct+4*s}], v11, s[28:31], s51 offen offset:{s*64}")
        e("s_add_u32 s51, s51, 0x20000")
    lab("K1_NOUK")
    e("v_lshrrev_b32 v12, 2, v4")
    e("v_and_b32 v13, 3, v4")
    e("v_lshl_add_u32 v14, v3, 3, v12")
    e("v_lshlrev_b32 v15, 7, v14")
    e("v_lshrrev_b32 v16, 1, v13")
    e("v_mov_b32 v17, s3"); e("v_lshl_add_u32 v16, v17, 1, v16")
    e("v_and_b32 v17, 2, v12")
    e("v_and_b32 v18, 1, v3"); e("v_lshl_add_u32 v17, v18, 2, v17")
    e("v_xor_b32 v16, v16, v17")
    e("v_lshl_add_u32 v15, v16, 4, v15")
    e("v_and_b32 v13, 1, v13"); e("v_lshl_add_u32 v15, v13, 3, v15")
    for r in range(4): e(f"v_mov_b32 v{20+r}, 0")
    e("s_waitcnt vmcnt(0)"); e("s_barrier")
    for s in range(16):
        b=24+4*(s&3)
        e(f"ds_read_b64_tr_b16 v[{b}:{b+1}], v15 offset:{s*4096}")
        e(f"ds_read_b64_tr_b16 v[{b+2}:{b+3}], v15 offset:{s*4096+512}")
        e("s_waitcnt lgkmcnt(0)")
        e(f"v_mfma_f32_16x16x32_bf16 v[20:23], v[{64+4*s}:{67+4*s}], v[{b}:{b+3}], v[20:23]")
    e("s_nop 7"); e("s_nop 3")
    e("v_cmp_gt_u32 vcc, 16, v1")
    e("s_cmp_ge_u32 s2, 64"); e("s_cbranch_scc0 K1_Q")
    e("s_and_saveexec_b64 s[60:61], vcc")
    e("s_mul_i32 s52, s45, 28672"); e("s_lshl_b32 s53, s41, 1"); e("s_add_u32 s52, s52, s53")
    e("s_lshl_b32 s53, s3, 6"); e("s_add_u32 s52, s52, s53"); e(f"s_add_u32 s52, s52, {GU}")
    e("v_lshlrev_b32 v5, 2, v1")
    for i in range(4):
        e(f"buffer_store_dword v{20+i}, v5, s[32:35], s52 offen")
        e("s_add_u32 s52, s52, 7168")
    e("s_branch K1_END")
    lab("K1_Q")
    e("s_and_saveexec_b64 s[60:61], vcc")
    e("v_mov_b32 v5, s3"); e("v_lshl_add_u32 v5, v5, 4, v1"); e("v_lshlrev_b32 v5, 1, v5")
    e("v_add_u32 v5, 0x10000, v5")
    for i in range(4):
        e(f"v_cvt_pk_bf16_f32 v{24+i}, v{20+i}, v{20+i}")
        e(f"ds_write_b16 v5, v{24+i} offset:{i*128}")
    e("s_mov_b64 exec, s[60:61]")
    e("s_waitcnt lgkmcnt(0)"); e("s_barrier")
    e("v_and_b32 v5, 3, v1"); e("v_lshlrev_b32 v5, 7, v5"); e("v_lshl_add_u32 v5, v3, 4, v5")
    e("v_add_u32 v5, 0x10000, v5")
    e("ds_read_b128 v[24:27], v5"); e("ds_read_b128 v[28:31], v5 offset:64")
    e("v_lshlrev_b32 v6, 16, v4"); e("v_lshl_add_u32 v6, v3, 4, v6")
    e("s_lshl_b32 s52, s43, 18"); e("s_lshl_b32 s53, s42, 11"); e("s_add_u32 s52, s52, s53")
    e("s_lshl_b32 s53, s3, 9"); e("s_add_u32 s52, s52, s53")
    e("v_cmp_gt_u32 vcc, 4, v4")
    e("s_waitcnt lgkmcnt(0)")
    for ct in range(8):
        a=32+4*ct
        e(f"v_mfma_f32_16x16x32_bf16 v[{a}:{a+3}], v[{128+8*ct}:{131+8*ct}], v[24:27], 0")
        e(f"v_mfma_f32_16x16x32_bf16 v[{a}:{a+3}], v[{132+8*ct}:{135+8*ct}], v[28:31], v[{a}:{a+3}]")
    e("s_nop 7"); e("s_nop 3")
    e("s_and_saveexec_b64 s[60:61], vcc")
    for ct in range(8):
        e(f"buffer_store_dwordx4 v[{32+4*ct}:{35+4*ct}], v6, s[32:35], s52 offen offset:{ct*64}")
    lab("K1_END")
    e("s_endpgm")
    L.append(desc(n,192))

KERNELS=[("k1_kernel",k1,(120,1,1),256,66048)]
try:
    import gen2
    KERNELS += gen2.more(sys.modules[__name__])
except ImportError:
    pass

def main():
    nk = int(sys.argv[2]) if len(sys.argv)>2 else len(KERNELS)
    ref=open(f"cdna_kernels/{NAME}.s.ref").read().split("\n")
    hdr=[l for l in ref if l.startswith(";") and "@launch" not in l]
    out=hdr+[f"; @launch kernel={k} grid=({g[0]},{g[1]},{g[2]}) block=({b},1,1) lds={lds}" for k,_,g,b,lds in KERNELS[:nk]]
    out+=['.amdgcn_target "amdgcn-amd-amdhsa--gfx950"',".text"]
    for k,f,*_ in KERNELS[:nk]: f()
    open(sys.argv[1],"w").write("\n".join(out+L)+"\n")
if __name__=="__main__":
    sys.modules.setdefault("gen", sys.modules[__name__])
    main()
```

```python
def more(G):
    e,lab,srd,prologue,desc,head,L = G.e,G.lab,G.srd,G.prologue,G.desc,G.head,G.L
    QP,GU,PART,STM,STL,OUTP,WS_END = G.QP,G.GU,G.PART,G.STM,G.STL,G.OUTP,G.WS_END
    def f(i): return ((i&7)<<1)|(i>>3)
    def tr_addr(dst, rowshift, t1,t2,t3):
        e(f"v_lshrrev_b32 v{t1}, 2, v4")
        e(f"v_lshl_add_u32 v{t1}, v3, 2, v{t1}")
        e(f"v_and_b32 v{t2}, 7, v{t1}"); e(f"v_lshlrev_b32 v{t2}, 1, v{t2}")
        e(f"v_lshrrev_b32 v{t3}, 3, v{t1}"); e(f"v_or_b32 v{t2}, v{t2}, v{t3}")
        e(f"v_bfe_u32 v{t3}, v4, 1, 1"); e(f"v_xor_b32 v{t2}, v{t2}, v{t3}")
        e(f"v_lshlrev_b32 v{dst}, {rowshift}, v{t1}")
        e(f"v_lshl_add_u32 v{dst}, v{t2}, 4, v{dst}")
        e(f"v_and_b32 v{t3}, 1, v4"); e(f"v_lshl_add_u32 v{dst}, v{t3}, 3, v{dst}")
    def bfly(v, tmp, addr, op):
        for k in (1,2,4,8,16,32):
            e(f"v_xor_b32 v{addr}, {k}, v1"); e(f"v_lshlrev_b32 v{addr}, 2, v{addr}")
            e(f"ds_bpermute_b32 v{tmp}, v{addr}, v{v}"); e("s_waitcnt lgkmcnt(0)")
            e(f"{op} v{v}, v{v}, v{tmp}")
    def rbf(v):
        e(f"v_cvt_pk_bf16_f32 v{v}, v{v}, v{v}"); e(f"v_lshlrev_b32 v{v}, 16, v{v}")

    def k2():
        n="k2_kernel"; head(n)
        e("s_cmp_ge_u32 s2, 256"); e("s_cbranch_scc1 K2_END")
        e("s_load_dwordx2 s[4:5], s[0:1], 8"); e("s_load_dwordx2 s[16:17], s[0:1], 104")
        prologue()
        e("s_waitcnt lgkmcnt(0)")
        srd(20,4,16777216); srd(32,16,WS_END)
        e("s_lshr_b32 s40, s2, 6"); e("s_and_b32 s41, s2, 63")
        e("s_lshl_b32 s42, s2, 16"); e("s_lshl_b32 s43, s3, 14"); e("s_add_u32 s42, s42, s43")
        for i in range(16):
            e(f"v_xor_b32 v8, {f(i)}, v1"); e("v_lshlrev_b32 v8, 4, v8")
            e(f"s_add_u32 m0, s43, {i*1024}"); e("s_nop 0")
            e("buffer_load_dwordx4 v8, s[20:23], s42 offen lds")
            e("s_add_u32 s42, s42, 1024")
        e("v_lshlrev_b32 v9, 4, v1")
        e("s_lshl_b32 s44, s40, 15"); e("s_lshl_b32 s45, s3, 13"); e("s_add_u32 s44, s44, s45")
        e("s_mul_i32 s45, s3, 8320"); e("s_add_u32 s45, s45, 0x10000")
        for i in range(8):
            e(f"s_add_u32 m0, s45, {i*1040}"); e("s_nop 0")
            e("buffer_load_dwordx4 v9, s[32:35], s44 offen lds"); e("s_add_u32 s44, s44, 1024")
        e("v_and_b32 v12, 7, v4"); e("v_lshlrev_b32 v12, 1, v12"); e("v_lshrrev_b32 v13, 3, v4"); e("v_or_b32 v12, v12, v13")
        e("v_lshlrev_b32 v13, 10, v4"); e("v_add_u32 v13, s43, v13")
        for s4 in range(4):
            e(f"v_add_u32 v14, {4*s4}, v3"); e("v_xor_b32 v14, v14, v12"); e(f"v_lshl_add_u32 v{16+s4}, v14, 4, v13")
        e("v_mul_u32_u24 v20, 1040, v4"); e("v_lshl_add_u32 v20, v3, 4, v20"); e("v_add_u32 v20, 0x10000, v20")
        for r in range(8): e(f"v_mov_b32 v{24+r}, 0")
        e("s_waitcnt vmcnt(0) lgkmcnt(0)"); e("s_barrier")
        for s in range(16):
            b=32+12*(s&1)
            e(f"ds_read_b128 v[{b}:{b+3}], v{16+(s&3)} offset:{(s>>2)*256}")
            e(f"ds_read_b128 v[{b+4}:{b+7}], v20 offset:{s*64}")
            e(f"ds_read_b128 v[{b+8}:{b+11}], v20 offset:{s*64+16640}")
            e("s_waitcnt lgkmcnt(0)")
            e(f"v_mfma_f32_16x16x32_bf16 v[24:27], v[{b}:{b+3}], v[{b+4}:{b+7}], v[24:27]")
            e(f"v_mfma_f32_16x16x32_bf16 v[28:31], v[{b}:{b+3}], v[{b+8}:{b+11}], v[28:31]")
        e("s_nop 7"); e("s_nop 3")
        e("v_mov_b32 v21, s3"); e("v_lshl_add_u32 v21, v21, 2, v3"); e("v_lshlrev_b32 v21, 2, v21")
        e("v_lshl_add_u32 v21, v4, 6, v21"); e("v_add_u32 v21, 0x18200, v21")
        e("v_lshlrev_b32 v22, 6, v4"); e("v_add_u32 v22, 0x18200, v22")
        for ht in range(2):
            a=24+4*ht
            e(f"v_max_f32 v32, v{a}, v{a+1}"); e(f"v_max3_f32 v32, v32, v{a+2}, v{a+3}")
            e(f"ds_write_b32 v21, v32 offset:{ht*1024}")
        e("s_waitcnt lgkmcnt(0)"); e("s_barrier")
        e("s_mov_b32 s46, 0x3e0293ee")
        e("s_lshr_b32 s47, s3, 1"); e("s_lshl_b32 s47, s47, 6"); e("s_and_b32 s48, s3, 1"); e("s_lshl_b32 s48, s48, 3"); e("s_add_u32 s47, s47, s48")
        e("v_mul_u32_u24 v23, 144, v4"); e("v_lshl_add_u32 v23, v3, 4, v23"); e("v_add_u32 v23, s47, v23"); e("v_add_u32 v23, 0x19200, v23")
        for ht in range(2):
            a=24+4*ht
            for k in range(4): e(f"ds_read_b128 v[{32+4*k}:{35+4*k}], v22 offset:{ht*1024+k*16}")
            e("s_waitcnt lgkmcnt(0)")
            e("v_max3_f32 v32, v32, v33, v34")
            for k in range(35,47,2): e(f"v_max3_f32 v32, v32, v{k}, v{k+1}")
            e("v_max_f32 v32, v32, v47")
            e(f"v_mul_f32 v{56+ht}, s46, v32")
            for i in range(4):
                e(f"v_fma_f32 v{a+i}, v{a+i}, s46, -v{56+ht}"); e(f"v_exp_f32 v{a+i}, v{a+i}")
            e("s_nop 0")
            e(f"v_add_f32 v33, v{a}, v{a+1}"); e(f"v_add_f32 v34, v{a+2}, v{a+3}"); e("v_add_f32 v33, v33, v34")
            e(f"ds_write_b32 v21, v33 offset:{2048+ht*1024}")
            e(f"v_cvt_pk_bf16_f32 v34, v{a}, v{a+1}"); e(f"v_cvt_pk_bf16_f32 v35, v{a+2}, v{a+3}")
            e(f"ds_write_b64 v23, v[34:35] offset:{ht*2304}")
        e("s_waitcnt lgkmcnt(0)"); e("s_barrier")
        e("s_cmp_lg_u32 s3, 0"); e("s_cbranch_scc1 K2_PV")
        e("v_cmp_gt_u32 vcc, 16, v1"); e("s_and_saveexec_b64 s[60:61], vcc")
        e("v_lshlrev_b32 v48, 10, v4")
        e("s_lshl_b32 s47, s40, 8"); e("s_lshl_b32 s48, s41, 2"); e("s_add_u32 s47, s47, s48")
        e(f"s_add_u32 s48, s47, {STM}"); e(f"s_add_u32 s49, s47, {STL}")
        for ht in range(2):
            for k in range(4): e(f"ds_read_b128 v[{32+4*k}:{35+4*k}], v22 offset:{2048+ht*1024+k*16}")
            e("s_waitcnt lgkmcnt(0)")
            for k in range(33,48): e(f"v_add_f32 v32, v32, v{k}")
            e(f"buffer_store_dword v{56+ht}, v48, s[32:35], s48 offen")
            e(f"buffer_store_dword v32, v48, s[32:35], s49 offen")
            e("s_add_u32 s48, s48, 16384"); e("s_add_u32 s49, s49, 16384")
        e("s_mov_b64 exec, s[60:61]")
        lab("K2_PV")
        e("v_mul_u32_u24 v23, 144, v4"); e("v_lshl_add_u32 v23, v3, 4, v23"); e("v_add_u32 v23, 0x19200, v23")
        for ht in range(2):
            for ks in range(2): e(f"ds_read_b128 v[{32+8*ht+4*ks}:{35+8*ht+4*ks}], v23 offset:{ht*2304+ks*64}")
        tr_addr(48,10,49,50,51)
        e("s_lshl_b32 s47, s3, 8"); e("v_add_u32 v48, s47, v48")
        e("v_mul_u32_u24 v49, 1040, v4"); e("v_lshl_add_u32 v49, v3, 3, v49"); e("v_add_u32 v49, s47, v49"); e("v_add_u32 v49, 0x10000, v49")
        for ct in range(8):
            e(f"v_xor_b32 v50, {ct*32}, v48")
            for ks in range(2):
                e(f"ds_read_b64_tr_b16 v[{52+4*ks}:{53+4*ks}], v50 offset:{ks*32768}")
                e(f"ds_read_b64_tr_b16 v[{54+4*ks}:{55+4*ks}], v50 offset:{ks*32768+16384}")
            e("s_waitcnt lgkmcnt(0)")
            for ht in range(2):
                a=64+8*(ct&1)+4*ht
                e(f"v_mfma_f32_16x16x32_bf16 v[{a}:{a+3}], v[52:55], v[{32+8*ht}:{35+8*ht}], 0")
                e(f"v_mfma_f32_16x16x32_bf16 v[{a}:{a+3}], v[56:59], v[{36+8*ht}:{39+8*ht}], v[{a}:{a+3}]")
            e("s_nop 7"); e("s_nop 3")
            for ht in range(2):
                a=64+8*(ct&1)+4*ht
                e(f"v_cvt_pk_bf16_f32 v{a}, v{a}, v{a+1}"); e(f"v_cvt_pk_bf16_f32 v{a+1}, v{a+2}, v{a+3}")
                e(f"ds_write_b64 v49, v[{a}:{a+1}] offset:{ht*16640+ct*32}")
        e("s_waitcnt lgkmcnt(0)"); e("s_barrier")
        e("v_lshrrev_b32 v50, 6, v0"); e("v_mul_u32_u24 v51, 1040, v50"); e("v_lshl_add_u32 v51, v1, 4, v51"); e("v_add_u32 v51, 0x10000, v51")
        e("v_lshlrev_b32 v52, 18, v50"); e("v_lshrrev_b32 v53, 3, v1"); e("v_lshl_add_u32 v52, v53, 15, v52")
        e("v_and_b32 v53, 7, v1"); e("v_lshl_add_u32 v52, v53, 4, v52")
        e("s_lshl_b32 s47, s40, 13"); e("s_lshl_b32 s48, s41, 7"); e("s_add_u32 s47, s47, s48"); e(f"s_add_u32 s47, s47, {PART}")
        for i in range(8): e(f"ds_read_b128 v[{64+4*i}:{67+4*i}], v51 offset:{i*4160}")
        for i in range(8):
            e(f"s_waitcnt lgkmcnt({7-i})")
            e(f"buffer_store_dwordx4 v[{64+4*i}:{67+4*i}], v52, s[32:35], s47 offen"); e("s_add_u32 s47, s47, 0x100000")
        lab("K2_END"); e("s_endpgm")
        L.append(desc(n,192))

    CTXP=0xC00000
    def k3():
        n="k3_kernel"; head(n)
        e("s_cmp_ge_u32 s2, 256"); e("s_cbranch_scc1 K3_END")
        e("s_load_dwordx2 s[4:5], s[0:1], 32"); e("s_load_dwordx2 s[16:17], s[0:1], 104")
        prologue()
        e("s_waitcnt lgkmcnt(0)")
        srd(20,4,4194304); srd(32,16,WS_END)
        e("s_and_b32 s40, s2, 31"); e("s_lshr_b32 s41, s2, 5")
        e("s_lshl_b32 s42, s41, 19"); e("s_lshl_b32 s44, s40, 8"); e("s_add_u32 s42, s42, s44")
        e("s_lshl_b32 s44, s3, 17"); e("s_add_u32 s42, s42, s44")
        e("s_lshl_b32 s43, s3, 12")
        for i in range(4):
            e(f"v_add_u32 v8, {4*i}, v3")
            e("v_and_b32 v9, 7, v8"); e("v_lshlrev_b32 v9, 1, v9"); e("v_lshrrev_b32 v10, 3, v8"); e("v_or_b32 v9, v9, v10")
            e("v_xor_b32 v9, v9, v4"); e("v_lshlrev_b32 v9, 4, v9"); e("v_lshl_add_u32 v9, v8, 13, v9")
            e(f"s_add_u32 m0, s43, {i*1024}"); e("s_nop 0")
            e("buffer_load_dwordx4 v9, s[20:23], s42 offen lds")
        e("v_lshrrev_b32 v10, 5, v1"); e("v_lshlrev_b32 v10, 12, v10"); e("v_and_b32 v11, 31, v1"); e("v_lshl_add_u32 v10, v11, 2, v10")
        e("s_lshl_b32 s44, s40, 3"); e("s_add_u32 s44, s44, s41"); e("s_lshl_b32 s44, s44, 2"); e("s_add_u32 s44, s44, s3")
        e("s_lshl_b32 s44, s44, 13"); e(f"s_add_u32 s44, s44, {PART}")
        for j in range(32): e(f"buffer_load_dword v{64+j}, v10, s[32:35], s44 offen offset:{j*128}")
        e("v_lshlrev_b32 v12, 2, v1")
        e("s_lshl_b32 s44, s40, 10"); e("s_lshl_b32 s45, s3, 8"); e("s_add_u32 s44, s44, s45")
        e(f"s_add_u32 s45, s44, {STM}"); e(f"s_add_u32 s44, s44, {STL}")
        e("buffer_load_dword v13, v12, s[32:35], s45 offen"); e("buffer_load_dword v14, v12, s[32:35], s44 offen")
        e("s_waitcnt vmcnt(0)")
        e("v_mov_b32 v15, v13"); bfly(15,16,17,"v_max_f32")
        e("v_sub_f32 v13, v13, v15"); e("v_exp_f32 v13, v13"); e("s_nop 0")
        e("v_mul_f32 v14, v14, v13"); bfly(14,16,17,"v_add_f32")
        e("v_rcp_f32 v14, v14"); e("s_nop 0"); e("v_mul_f32 v13, v13, v14")
        e("s_lshl_b32 s44, s3, 8"); e("s_add_u32 s44, s44, 0x4000")
        e("v_add_u32 v12, s44, v12"); e("ds_write_b32 v12, v13")
        e("v_lshrrev_b32 v12, 5, v1"); e("v_lshlrev_b32 v12, 7, v12"); e("v_add_u32 v12, s44, v12")
        e("s_waitcnt lgkmcnt(0)")
        for k in range(8): e(f"ds_read_b128 v[{96+4*k}:{99+4*k}], v12 offset:{k*16}")
        e("v_mov_b32 v20, 0"); e("v_mov_b32 v21, 0")
        e("s_waitcnt lgkmcnt(0)")
        for j in range(32):
            e(f"v_lshlrev_b32 v22, 16, v{64+j}"); e(f"v_and_b32 v23, 0xffff0000, v{64+j}")
            e(f"v_fmac_f32 v20, v22, v{96+j}"); e(f"v_fmac_f32 v21, v23, v{96+j}")
        e("v_xor_b32 v17, 32, v1"); e("v_lshlrev_b32 v17, 2, v17")
        e("ds_bpermute_b32 v22, v17, v20"); e("ds_bpermute_b32 v23, v17, v21"); e("s_waitcnt lgkmcnt(0)")
        e("v_add_f32 v20, v20, v22"); e("v_add_f32 v21, v21, v23")
        e("v_cvt_pk_bf16_f32 v20, v20, v21")
        e("v_and_b32 v11, 31, v1")
        e("v_lshrrev_b32 v12, 4, v11"); e("v_lshlrev_b32 v12, 6, v12")
        e("v_bfe_u32 v13, v11, 1, 2"); e("v_lshl_add_u32 v12, v13, 4, v12")
        e("v_bfe_u32 v13, v11, 3, 1"); e("v_lshl_add_u32 v12, v13, 3, v12")
        e("v_and_b32 v13, 1, v11"); e("v_lshl_add_u32 v12, v13, 2, v12")
        e("s_lshl_b32 s44, s3, 7"); e("s_add_u32 s44, s44, 0x4400"); e("v_add_u32 v12, s44, v12")
        e("ds_write_b32 v12, v20")
        e("s_waitcnt vmcnt(0) lgkmcnt(0)"); e("s_barrier")
        e("v_and_b32 v12, 3, v4"); e("v_lshlrev_b32 v12, 7, v12"); e("v_lshl_add_u32 v12, v3, 4, v12"); e("v_add_u32 v12, 0x4400, v12")
        e("ds_read_b128 v[24:27], v12"); e("ds_read_b128 v[28:31], v12 offset:64")
        tr_addr(13,8,14,15,16)
        e("s_lshl_b32 s44, s3, 6"); e("v_xor_b32 v13, s44, v13")
        e("v_lshlrev_b32 v14, 2, v1")
        e("s_lshl_b32 s44, s41, 16"); e("s_lshl_b32 s45, s40, 9"); e("s_add_u32 s44, s44, s45"); e("s_lshl_b32 s45, s3, 7"); e("s_add_u32 s44, s44, s45"); e(f"s_add_u32 s44, s44, {CTXP}")
        for u in range(2):
            e(f"v_xor_b32 v16, {u*32}, v13")
            for ks in range(2):
                e(f"ds_read_b64_tr_b16 v[{32+4*ks}:{33+4*ks}], v16 offset:{ks*8192}")
                e(f"ds_read_b64_tr_b16 v[{34+4*ks}:{35+4*ks}], v16 offset:{ks*8192+4096}")
            e("s_waitcnt lgkmcnt(0)")
            a=40+4*u
            e(f"v_mfma_f32_16x16x32_bf16 v[{a}:{a+3}], v[24:27], v[32:35], 0")
            e(f"v_mfma_f32_16x16x32_bf16 v[{a}:{a+3}], v[28:31], v[36:39], v[{a}:{a+3}]")
        e("s_nop 7"); e("s_nop 3")
        e("v_cmp_gt_u32 vcc, 16, v1"); e("s_and_saveexec_b64 s[60:61], vcc")
        for i in range(4):
            for u in range(2):
                e(f"buffer_store_dword v{40+4*u+i}, v14, s[32:35], s44 offen offset:{u*64}")
            e("s_add_u32 s44, s44, 16384")
        lab("K3_END"); e("s_endpgm")
        L.append(desc(n,128))

    def k3b():
        n="k3b_kernel"; head(n)
        e("s_cmp_ge_u32 s2, 184"); e("s_cbranch_scc1 K3B_END")
        e("s_load_dwordx2 s[6:7], s[0:1], 40"); e("s_load_dwordx2 s[8:9], s[0:1], 72"); e("s_load_dwordx2 s[16:17], s[0:1], 104")
        prologue()
        e("s_waitcnt lgkmcnt(0)")
        srd(32,16,WS_END)
        e("s_sub_u32 s42, s2, 128"); e("s_mov_b32 s11, 4194304")
        e("s_cmp_ge_u32 s2, 128")
        e("s_cselect_b32 s6, s8, s6"); e("s_cselect_b32 s7, s9, s7")
        e("s_cselect_b32 s10, 1835008, s11"); e("s_cselect_b32 s40, s42, s2")
        e("s_mov_b32 s24, s6"); e("s_and_b32 s25, s7, 0xffff"); e("s_mov_b32 s26, s10"); e("s_mov_b32 s27, 0x00020000")
        e("s_lshl_b32 s42, s40, 15"); e("s_lshl_b32 s43, s3, 13"); e("s_add_u32 s42, s42, s43")
        e("s_and_b32 s44, s3, 1"); e("v_xor_b32 v7, s44, v1")
        for i in range(8):
            e(f"v_xor_b32 v8, {f(i)}, v7"); e("v_lshlrev_b32 v8, 4, v8")
            e(f"s_add_u32 m0, s43, {i*1024}"); e("s_nop 0")
            e("buffer_load_dwordx4 v8, s[24:27], s42 offen lds"); e("s_add_u32 s42, s42, 1024")
        e("v_bfe_u32 v9, v0, 5, 2"); e("v_and_b32 v10, 31, v0")
        e("v_bfe_u32 v12, v10, 2, 2"); e("v_lshlrev_b32 v12, 4, v12")
        e("v_bfe_u32 v13, v10, 4, 1"); e("v_lshl_add_u32 v12, v13, 3, v12")
        e("v_and_b32 v13, 3, v10"); e("v_lshl_add_u32 v12, v13, 1, v12")
        e("v_lshl_add_u32 v12, v9, 6, v12"); e("v_add_u32 v12, 0x8000, v12")
        e("s_cmp_ge_u32 s2, 128"); e("s_cbranch_scc1 K3B_MLP")
        e("v_lshlrev_b32 v11, 14, v9"); e("v_lshl_add_u32 v11, v10, 2, v11")
        e("s_lshl_b32 s44, s2, 7"); e(f"s_add_u32 s44, s44, {CTXP}")
        for c in range(8):
            e(f"buffer_load_dword v{20+c}, v11, s[32:35], s44 offen"); e("s_add_u32 s44, s44, 65536")
        e("s_waitcnt vmcnt(0)")
        for c in range(1,8): e(f"v_add_f32 v20, v20, v{20+c}")
        e("s_branch K3B_W")
        lab("K3B_MLP")
        e("v_mul_u32_u24 v11, 7168, v9"); e("v_lshl_add_u32 v11, v10, 2, v11")
        e("s_lshl_b32 s44, s40, 7"); e(f"s_add_u32 s44, s44, {GU}"); e("s_add_u32 s45, s44, 28672")
        e("buffer_load_dword v20, v11, s[32:35], s44 offen"); e("buffer_load_dword v21, v11, s[32:35], s45 offen")
        e("s_waitcnt vmcnt(0)")
        rbf(20); rbf(21); e("v_max_f32 v20, 0, v20"); e("v_mul_f32 v20, v20, v21")
        lab("K3B_W")
        e("v_cvt_pk_bf16_f32 v20, v20, v20"); e("ds_write_b16 v12, v20")
        e("s_waitcnt vmcnt(0) lgkmcnt(0)"); e("s_barrier")
        e("v_and_b32 v12, 3, v4"); e("v_lshlrev_b32 v12, 6, v12"); e("v_lshl_add_u32 v12, v3, 4, v12"); e("v_add_u32 v12, 0x8000, v12")
        e("ds_read_b128 v[24:27], v12")
        tr_addr(13,10,14,15,16)
        e("s_lshl_b32 s44, s3, 8"); e("v_add_u32 v13, s44, v13")
        e("v_lshlrev_b32 v18, 2, v1")
        e("s_lshl_b32 s45, s2, 13"); e("s_lshl_b32 s46, s3, 9"); e("s_add_u32 s45, s45, s46"); e(f"s_add_u32 s45, s45, {OUTP}")
        e("v_cmp_gt_u32 vcc, 16, v1")
        for nt in range(8):
            e(f"v_xor_b32 v16, {nt*32}, v13")
            e(f"ds_read_b64_tr_b16 v[{32+4*nt}:{33+4*nt}], v16")
            e(f"ds_read_b64_tr_b16 v[{34+4*nt}:{35+4*nt}], v16 offset:16384")
        e("s_waitcnt lgkmcnt(0)")
        for nt in range(8):
            e(f"v_mfma_f32_16x16x32_bf16 v[{64+4*nt}:{67+4*nt}], v[24:27], v[{32+4*nt}:{35+4*nt}], 0")
        e("s_nop 7"); e("s_nop 3")
        e("s_and_saveexec_b64 s[60:61], vcc")
        for i in range(4):
            for nt in range(8): e(f"buffer_store_dword v{64+4*nt+i}, v18, s[32:35], s45 offen offset:{nt*64}")
            e("s_add_u32 s45, s45, 2048")
        lab("K3B_END"); e("s_endpgm")
        L.append(desc(n,96))

    def k4():
        n="k4_kernel"; head(n)
        e("s_cmp_ge_u32 s2, 64"); e("s_cbranch_scc1 K4_END")
        e("s_load_dwordx2 s[4:5], s[0:1], 0"); e("s_load_dwordx4 s[8:11], s[0:1], 80"); e("s_load_dwordx2 s[16:17], s[0:1], 104")
        prologue()
        e("s_waitcnt lgkmcnt(0)")
        srd(20,4,4096); srd(24,8,1024); srd(28,10,4096); srd(32,16,WS_END)
        e("s_lshr_b32 s40, s2, 4")
        e("v_and_b32 v7, 31, v1"); e("v_lshrrev_b32 v8, 5, v0"); e("v_lshlrev_b32 v8, 13, v8"); e("v_lshl_add_u32 v8, v7, 2, v8")
        e("s_lshl_b32 s42, s2, 7"); e(f"s_add_u32 s42, s42, {OUTP}")
        for i in range(23):
            e(f"buffer_load_dword v{32+i}, v8, s[32:35], s42 offen"); e("s_add_u32 s42, s42, 65536")
        e("v_lshlrev_b32 v9, 4, v1"); e("s_lshl_b32 s43, s40, 10")
        e("buffer_load_dwordx4 v[12:15], v9, s[20:23], s43 offen"); e("buffer_load_dwordx4 v[16:19], v9, s[24:27], 0 offen")
        e("s_waitcnt vmcnt(2)")
        for i in range(1,16): e(f"v_add_f32 v32, v32, v{32+i}")
        for i in range(49,55): e(f"v_add_f32 v48, v48, v{i}")
        e("v_lshlrev_b32 v10, 2, v0"); e("ds_write_b32 v10, v32"); e("ds_write_b32 v10, v48 offset:1024")
        e("s_waitcnt vmcnt(0) lgkmcnt(0)"); e("s_barrier")
        e("s_cmp_lg_u32 s3, 0"); e("s_cbranch_scc1 K4_END")
        e("v_mov_b32 v20, 0")
        for r in range(4):
            e(f"v_lshlrev_b32 v21, 16, v{12+r}"); e(f"v_lshlrev_b32 v22, 16, v{16+r}"); e("v_mul_f32 v21, v21, v22"); rbf(21); e("v_add_f32 v20, v20, v21")
            e(f"v_and_b32 v21, 0xffff0000, v{12+r}"); e(f"v_and_b32 v22, 0xffff0000, v{16+r}"); e("v_mul_f32 v21, v21, v22"); rbf(21); e("v_add_f32 v20, v20, v21")
        bfly(20,21,22,"v_add_f32")
        rbf(20)
        e("v_mul_f32 v20, 0xbfb8aa3b, v20"); e("v_exp_f32 v20, v20"); e("s_nop 0"); e("v_add_f32 v20, 1.0, v20"); e("v_rcp_f32 v20, v20"); e("s_nop 0")
        rbf(20)
        e("v_sub_f32 v21, 1.0, v20"); rbf(21)
        e("v_lshlrev_b32 v8, 2, v7")
        for k in range(8):
            e(f"ds_read_b32 v{24+k}, v8 offset:{k*128}"); e(f"ds_read_b32 v{56+k}, v8 offset:{1024+k*128}")
        e("s_waitcnt lgkmcnt(0)")
        for k in range(1,8):
            e(f"v_add_f32 v24, v24, v{24+k}"); e(f"v_add_f32 v56, v56, v{56+k}")
        rbf(24); rbf(56)
        e("v_mul_f32 v24, v20, v24"); rbf(24); e("v_mul_f32 v56, v21, v56"); rbf(56)
        e("v_add_f32 v24, v24, v56"); e("v_cvt_pk_bf16_f32 v24, v24, v24")
        e("v_lshlrev_b32 v9, 1, v7"); e("s_lshl_b32 s42, s2, 6")
        e("v_cmp_gt_u32 vcc, 32, v1"); e("s_and_saveexec_b64 s[60:61], vcc")
        e("buffer_store_short v24, v9, s[28:31], s42 offen")
        lab("K4_END"); e("s_endpgm")
        L.append(desc(n,64))
    return [("k2_kernel",k2,(256,1,1),256,107520),("k3_kernel",k3,(256,1,1),256,18432),("k3b_kernel",k3b,(184,1,1),256,33024),("k4_kernel",k4,(64,1,1),256,2048)]
```

```python
import sys
NAME = "gated_mix__compressed_kv_cla__glu_gated_reglu__decode"
QP=0; GU=0x80000; PART=0x100000; STM=0xA00000; STL=0xA08000; OUTP=0xA20000; WS_END=0xD00000
L=[]
def e(s): L.append("    "+s)
def lab(s): L.append(s+":")

def srd(d, ptr, size):
    e(f"s_mov_b32 s{d}, s{ptr}"); e(f"s_and_b32 s{d+1}, s{ptr+1}, 0xffff")
    e(f"s_mov_b32 s{d+2}, {size}"); e(f"s_mov_b32 s{d+3}, 0x00020000")

def prologue():
    e("v_and_b32 v1, 63, v0")
    e("v_lshrrev_b32 v2, 6, v0")
    e("s_nop 0")
    e("v_readfirstlane_b32 s3, v2")
    e("v_lshrrev_b32 v3, 4, v1")
    e("v_and_b32 v4, 15, v1")

def desc(name, vg, sg=96):
    vg=(vg+3)//4*4
    return f""".section .rodata,"a"
.p2align 6
.amdhsa_kernel {name}
  .amdhsa_next_free_vgpr {vg}
  .amdhsa_next_free_sgpr {sg}
  .amdhsa_accum_offset {vg}
  .amdhsa_group_segment_fixed_size 0
  .amdhsa_kernarg_size 112
  .amdhsa_user_sgpr_count 2
  .amdhsa_user_sgpr_kernarg_segment_ptr 1
  .amdhsa_system_sgpr_workgroup_id_x 1
.end_amdhsa_kernel
.text"""
def head(name):
    L.append(f".globl {name}\n.p2align 8\n.type {name},@function\n{name}:")

QB=0x40000
QPB=0
CTXP=0xA10000
def k1():
    n="k1_kernel"; head(n)
    e("s_cmp_ge_u32 s2, 240"); e("s_cbranch_scc1 K1_END")
    e("s_load_dwordx2 s[4:5], s[0:1], 0"); e("s_load_dwordx2 s[8:9], s[0:1], 16")
    e("s_load_dwordx4 s[12:15], s[0:1], 56"); e("s_load_dwordx2 s[16:17], s[0:1], 104")
    prologue()
    e("s_waitcnt lgkmcnt(0)")
    srd(20,4,4096); srd(32,16,WS_END)
    e("s_cmp_ge_u32 s2, 128"); e("s_cbranch_scc1 K1_MLP")
    srd(24,8,4194304)
    e("s_movk_i32 s40, 8192")
    e("s_and_b32 s42, s2, 31"); e("s_lshr_b32 s43, s2, 5")
    e("s_lshl_b32 s41, s42, 8"); e("s_lshl_b32 s44, s43, 6"); e("s_add_u32 s41, s41, s44")
    e("s_branch K1_GO")
    lab("K1_MLP")
    e("s_sub_u32 s44, s2, 128")
    e("s_cmp_ge_u32 s44, 56"); e("s_cselect_b32 s45, 1, 0")
    e("s_cselect_b32 s46, 56, 0"); e("s_cselect_b32 s8, s14, s12"); e("s_cselect_b32 s9, s15, s13")
    e("s_sub_u32 s44, s44, s46")
    srd(24,8,1835008)
    e("s_movk_i32 s40, 3584"); e("s_lshl_b32 s41, s44, 6")
    lab("K1_GO")
    e("v_lshrrev_b32 v5, 2, v1"); e("v_and_b32 v6, 3, v1")
    e("v_lshrrev_b32 v7, 3, v5"); e("v_lshlrev_b32 v7, 1, v7"); e("v_xor_b32 v6, v6, v7")
    e("v_mul_lo_u32 v8, v5, s40"); e("v_lshl_add_u32 v8, v6, 4, v8"); e("v_add_u32 v8, s41, v8")
    e("s_lshl_b32 s48, s40, 4"); e("s_lshl_b32 s49, s3, 3"); e("s_mul_i32 s49, s49, s48")
    e("s_lshl_b32 s50, s3, 13")
    for i in range(8):
        e(f"s_add_u32 m0, s50, {i*1024}"); e("s_nop 0")
        e("buffer_load_dwordx4 v8, s[24:27], s49 offen lds"); e("s_add_u32 s49, s49, s48")
    e("v_and_b32 v10, 3, v1"); e("v_lshlrev_b32 v10, 10, v10"); e("v_lshl_add_u32 v10, v3, 4, v10")
    for s in range(16):
        e(f"buffer_load_dwordx4 v[{64+4*s}:{67+4*s}], v10, s[20:23], 0 offen offset:{s*64}")
    e("v_lshrrev_b32 v12, 2, v4"); e("v_and_b32 v13, 3, v4")
    e("v_lshl_add_u32 v14, v3, 3, v12"); e("v_lshlrev_b32 v15, 6, v14")
    e("v_lshrrev_b32 v16, 1, v13"); e("s_and_b32 s51, s3, 1"); e("v_mov_b32 v17, s51"); e("v_lshl_add_u32 v16, v17, 1, v16")
    e("v_and_b32 v18, 1, v3"); e("v_lshlrev_b32 v18, 1, v18"); e("v_xor_b32 v16, v16, v18")
    e("v_lshl_add_u32 v15, v16, 4, v15"); e("v_and_b32 v13, 1, v13"); e("v_lshl_add_u32 v15, v13, 3, v15")
    for r in range(4): e(f"v_mov_b32 v{20+r}, 0")
    e("s_waitcnt vmcnt(0)"); e("s_barrier")
    e("s_cmp_ge_u32 s3, 2"); e("s_cbranch_scc1 K1_END")
    for s in range(16):
        b=24+4*(s&3)
        e(f"ds_read_b64_tr_b16 v[{b}:{b+1}], v15 offset:{s*2048}")
        e(f"ds_read_b64_tr_b16 v[{b+2}:{b+3}], v15 offset:{s*2048+256}")
        e("s_waitcnt lgkmcnt(0)")
        e(f"v_mfma_f32_16x16x32_bf16 v[20:23], v[{64+4*s}:{67+4*s}], v[{b}:{b+3}], v[20:23]")
    e("s_nop 7"); e("s_nop 3")
    e("v_cmp_gt_u32 vcc, 16, v1"); e("s_and_saveexec_b64 s[60:61], vcc")
    e("s_cmp_ge_u32 s2, 128"); e("s_cbranch_scc0 K1_Q")
    e("s_mul_i32 s52, s45, 28672"); e("s_lshl_b32 s53, s41, 1"); e("s_add_u32 s52, s52, s53")
    e("s_lshl_b32 s53, s3, 6"); e("s_add_u32 s52, s52, s53"); e(f"s_add_u32 s52, s52, {GU}")
    e("v_lshlrev_b32 v5, 2, v1")
    for i in range(4):
        e(f"buffer_store_dword v{20+i}, v5, s[32:35], s52 offen"); e("s_add_u32 s52, s52, 7168")
    e("s_branch K1_END")
    lab("K1_Q")
    e("s_lshl_b32 s53, s3, 5"); e("s_add_u32 s52, s41, s53"); e(f"s_add_u32 s52, s52, {QB}")
    e("v_lshlrev_b32 v5, 1, v1")
    for i in range(4):
        e(f"v_cvt_pk_bf16_f32 v{20+i}, v{20+i}, v{20+i}")
        e(f"buffer_store_short v{20+i}, v5, s[32:35], s52 offen"); e("s_add_u32 s52, s52, 8192")
    lab("K1_END"); e("s_endpgm")
    L.append(desc(n,128))
def k1b():
    n="k1b_kernel"; head(n)
    e("s_cmp_ge_u32 s2, 256"); e("s_cbranch_scc1 K1B_END")
    e("s_load_dwordx2 s[8:9], s[0:1], 24"); e("s_load_dwordx2 s[16:17], s[0:1], 104")
    prologue()
    e("s_waitcnt lgkmcnt(0)")
    srd(28,8,4194304); srd(32,16,WS_END)
    e("s_and_b32 s42, s2, 31"); e("s_lshr_b32 s43, s2, 5")
    e("v_lshlrev_b32 v11, 13, v4"); e("v_lshl_add_u32 v11, v3, 4, v11")
    e("s_lshl_b32 s51, s43, 19"); e("s_lshl_b32 s52, s3, 17"); e("s_add_u32 s51, s51, s52"); e("s_lshl_b32 s52, s42, 8"); e("s_add_u32 s51, s51, s52")
    for s in range(4): e(f"buffer_load_dwordx4 v[{32+4*s}:{35+4*s}], v11, s[28:31], s51 offen offset:{s*64}")
    e("v_and_b32 v5, 3, v1"); e("v_lshlrev_b32 v5, 13, v5"); e("v_lshl_add_u32 v5, v3, 4, v5")
    e(f"s_add_u32 s52, s52, {QB}")
    for s in range(4): e(f"buffer_load_dwordx4 v[{48+4*s}:{51+4*s}], v5, s[32:35], s52 offen offset:{s*64}")
    e("v_lshlrev_b32 v6, 15, v4"); e("v_lshl_add_u32 v6, v3, 3, v6")
    e("s_lshl_b32 s52, s42, 10"); e("s_lshl_b32 s53, s43, 7"); e("s_add_u32 s52, s52, s53"); e("s_lshl_b32 s53, s3, 5"); e("s_add_u32 s52, s52, s53")
    e("v_cmp_gt_u32 vcc, 4, v4")
    e("s_waitcnt vmcnt(0)")
    for s in range(4):
        c="0" if s==0 else "v[20:23]"
        e(f"v_mfma_f32_16x16x32_bf16 v[20:23], v[{32+4*s}:{35+4*s}], v[{48+4*s}:{51+4*s}], {c}")
    e("s_nop 7"); e("s_nop 3")
    e("v_cvt_pk_bf16_f32 v20, v20, v21"); e("v_cvt_pk_bf16_f32 v21, v22, v23")
    e("s_and_saveexec_b64 s[60:61], vcc")
    e("buffer_store_dwordx2 v[20:21], v6, s[32:35], s52 offen")
    lab("K1B_END"); e("s_endpgm")
    L.append(desc(n,64))

KERNELS=[("k1_kernel",k1,(240,1,1),256,32768),("k1b_kernel",k1b,(256,1,1),256,0)]
try:
    import gen2
    KERNELS += gen2.more(sys.modules[__name__])
except ImportError:
    pass

def main():
    nk = int(sys.argv[2]) if len(sys.argv)>2 else len(KERNELS)
    ref=open(f"cdna_kernels/{NAME}.s.ref").read().split("\n")
    hdr=[l for l in ref if l.startswith(";") and "@launch" not in l]
    out=hdr+[f"; @launch kernel={k} grid=({g[0]},{g[1]},{g[2]}) block=({b},1,1) lds={lds}" for k,_,g,b,lds in KERNELS[:nk]]
    out+=['.amdgcn_target "amdgcn-amd-amdhsa--gfx950"',".text"]
    for k,f,*_ in KERNELS[:nk]: f()
    open(sys.argv[1],"w").write("\n".join(out+L)+"\n")
if __name__=="__main__":
    sys.modules.setdefault("gen", sys.modules[__name__])
    main()
```

```python
import sys
NAME = "gated_mix__compressed_kv_cla__glu_gated_reglu__decode"
QP=0; GU=0x80000; PART=0x100000; STM=0xA00000; STL=0xA08000; OUTP=0xA20000; WS_END=0xD00000
L=[]
def e(s): L.append("    "+s)
def lab(s): L.append(s+":")

def srd(d, ptr, size):
    e(f"s_mov_b32 s{d}, s{ptr}"); e(f"s_and_b32 s{d+1}, s{ptr+1}, 0xffff")
    e(f"s_mov_b32 s{d+2}, {size}"); e(f"s_mov_b32 s{d+3}, 0x00020000")

def prologue():
    e("v_and_b32 v1, 63, v0")
    e("v_lshrrev_b32 v2, 6, v0")
    e("s_nop 0")
    e("v_readfirstlane_b32 s3, v2")
    e("v_lshrrev_b32 v3, 4, v1")
    e("v_and_b32 v4, 15, v1")

def desc(name, vg, sg=96):
    vg=(vg+3)//4*4
    return f""".section .rodata,"a"
.p2align 6
.amdhsa_kernel {name}
  .amdhsa_next_free_vgpr {vg}
  .amdhsa_next_free_sgpr {sg}
  .amdhsa_accum_offset {vg}
  .amdhsa_group_segment_fixed_size 0
  .amdhsa_kernarg_size 112
  .amdhsa_user_sgpr_count 2
  .amdhsa_user_sgpr_kernarg_segment_ptr 1
  .amdhsa_system_sgpr_workgroup_id_x 1
.end_amdhsa_kernel
.text"""
def head(name):
    L.append(f".globl {name}\n.p2align 8\n.type {name},@function\n{name}:")

QB=0x40000
QPB=0
CTXP=0xA10000
def k1():
    n="k1_kernel"; head(n)
    e("s_cmp_ge_u32 s2, 256"); e("s_cbranch_scc1 K1_END")
    e("s_load_dwordx4 s[4:7], s[0:1], 0"); e("s_load_dwordx2 s[8:9], s[0:1], 16")
    e("s_load_dwordx4 s[12:15], s[0:1], 56"); e("s_load_dwordx2 s[16:17], s[0:1], 104")
    prologue()
    e("s_waitcnt lgkmcnt(0)")
    srd(20,4,4096); srd(32,16,WS_END); srd(64,6,16777216)
    e("v_lshlrev_b32 v62, 4, v0"); e("s_lshl_b32 s70, s2, 16")
    e("s_cmp_lt_u32 s2, 240"); e("s_cbranch_scc1 K1_WORK")
    for i in range(16): e(f"buffer_load_dwordx4 v[58:61], v62, s[64:67], s70 offen"); e("s_add_u32 s70, s70, 4096")
    e("s_branch K1_END")
    lab("K1_WORK")
    e("s_cmp_ge_u32 s2, 128"); e("s_cbranch_scc1 K1_MLP")
    srd(24,8,4194304)
    e("s_movk_i32 s40, 8192")
    e("s_and_b32 s42, s2, 31"); e("s_lshr_b32 s43, s2, 5")
    e("s_lshl_b32 s41, s42, 8"); e("s_lshl_b32 s44, s43, 6"); e("s_add_u32 s41, s41, s44")
    e("s_branch K1_GO")
    lab("K1_MLP")
    e("s_sub_u32 s44, s2, 128")
    e("s_cmp_ge_u32 s44, 56"); e("s_cselect_b32 s45, 1, 0")
    e("s_cselect_b32 s46, 56, 0"); e("s_cselect_b32 s8, s14, s12"); e("s_cselect_b32 s9, s15, s13")
    e("s_sub_u32 s44, s44, s46")
    srd(24,8,1835008)
    e("s_movk_i32 s40, 3584"); e("s_lshl_b32 s41, s44, 6")
    lab("K1_GO")
    e("v_lshrrev_b32 v5, 2, v1"); e("v_and_b32 v6, 3, v1")
    e("v_lshrrev_b32 v7, 3, v5"); e("v_lshlrev_b32 v7, 1, v7"); e("v_xor_b32 v6, v6, v7")
    e("v_mul_lo_u32 v8, v5, s40"); e("v_lshl_add_u32 v8, v6, 4, v8"); e("v_add_u32 v8, s41, v8")
    e("s_lshl_b32 s48, s40, 4"); e("s_lshl_b32 s49, s3, 3"); e("s_mul_i32 s49, s49, s48")
    e("s_lshl_b32 s50, s3, 13")
    for i in range(8):
        e(f"s_add_u32 m0, s50, {i*1024}"); e("s_nop 0")
        e("buffer_load_dwordx4 v8, s[24:27], s49 offen lds"); e("s_add_u32 s49, s49, s48")
    e("v_and_b32 v10, 3, v1"); e("v_lshlrev_b32 v10, 10, v10"); e("v_lshl_add_u32 v10, v3, 4, v10")
    for s in range(16):
        e(f"buffer_load_dwordx4 v[{64+4*s}:{67+4*s}], v10, s[20:23], 0 offen offset:{s*64}")
    for i in range(16): e(f"buffer_load_dwordx4 v[58:61], v62, s[64:67], s70 offen"); e("s_add_u32 s70, s70, 4096")
    e("v_lshrrev_b32 v12, 2, v4"); e("v_and_b32 v13, 3, v4")
    e("v_lshl_add_u32 v14, v3, 3, v12"); e("v_lshlrev_b32 v15, 6, v14")
    e("v_lshrrev_b32 v16, 1, v13"); e("s_and_b32 s51, s3, 1"); e("v_mov_b32 v17, s51"); e("v_lshl_add_u32 v16, v17, 1, v16")
    e("v_and_b32 v18, 1, v3"); e("v_lshlrev_b32 v18, 1, v18"); e("v_xor_b32 v16, v16, v18")
    e("v_lshl_add_u32 v15, v16, 4, v15"); e("v_and_b32 v13, 1, v13"); e("v_lshl_add_u32 v15, v13, 3, v15")
    for r in range(4): e(f"v_mov_b32 v{20+r}, 0")
    e("s_waitcnt vmcnt(16)"); e("s_barrier")
    e("s_cmp_ge_u32 s3, 2"); e("s_cbranch_scc1 K1_END")
    for s in range(16):
        b=24+4*(s&3)
        e(f"ds_read_b64_tr_b16 v[{b}:{b+1}], v15 offset:{s*2048}")
        e(f"ds_read_b64_tr_b16 v[{b+2}:{b+3}], v15 offset:{s*2048+256}")
        e("s_waitcnt lgkmcnt(0)")
        e(f"v_mfma_f32_16x16x32_bf16 v[20:23], v[{64+4*s}:{67+4*s}], v[{b}:{b+3}], v[20:23]")
    e("s_nop 7"); e("s_nop 3")
    e("v_cmp_gt_u32 vcc, 16, v1"); e("s_and_saveexec_b64 s[60:61], vcc")
    e("s_cmp_ge_u32 s2, 128"); e("s_cbranch_scc0 K1_Q")
    e("s_mul_i32 s52, s45, 28672"); e("s_lshl_b32 s53, s41, 1"); e("s_add_u32 s52, s52, s53")
    e("s_lshl_b32 s53, s3, 6"); e("s_add_u32 s52, s52, s53"); e(f"s_add_u32 s52, s52, {GU}")
    e("v_lshlrev_b32 v5, 2, v1")
    for i in range(4):
        e(f"buffer_store_dword v{20+i}, v5, s[32:35], s52 offen"); e("s_add_u32 s52, s52, 7168")
    e("s_branch K1_END")
    lab("K1_Q")
    e("s_lshl_b32 s53, s3, 5"); e("s_add_u32 s52, s41, s53"); e(f"s_add_u32 s52, s52, {QB}")
    e("v_lshlrev_b32 v5, 1, v1")
    for i in range(4):
        e(f"v_cvt_pk_bf16_f32 v{20+i}, v{20+i}, v{20+i}")
        e(f"buffer_store_short v{20+i}, v5, s[32:35], s52 offen"); e("s_add_u32 s52, s52, 8192")
    lab("K1_END"); e("s_endpgm")
    L.append(desc(n,128))
def k1b():
    n="k1b_kernel"; head(n)
    e("s_cmp_ge_u32 s2, 256"); e("s_cbranch_scc1 K1B_END")
    e("s_load_dwordx2 s[8:9], s[0:1], 24"); e("s_load_dwordx2 s[16:17], s[0:1], 104")
    e("s_load_dwordx4 s[4:7], s[0:1], 32"); e("s_load_dwordx2 s[10:11], s[0:1], 72")
    prologue()
    e("s_waitcnt lgkmcnt(0)")
    srd(28,8,4194304); srd(32,16,WS_END); srd(64,4,4194304); srd(68,6,4194304); srd(72,10,1835008)
    e("s_and_b32 s42, s2, 31"); e("s_lshr_b32 s43, s2, 5")
    e("v_lshlrev_b32 v11, 13, v4"); e("v_lshl_add_u32 v11, v3, 4, v11")
    e("s_lshl_b32 s51, s43, 19"); e("s_lshl_b32 s52, s3, 17"); e("s_add_u32 s51, s51, s52"); e("s_lshl_b32 s52, s42, 8"); e("s_add_u32 s51, s51, s52")
    for s in range(4): e(f"buffer_load_dwordx4 v[{32+4*s}:{35+4*s}], v11, s[28:31], s51 offen offset:{s*64}")
    e("v_and_b32 v5, 3, v1"); e("v_lshlrev_b32 v5, 13, v5"); e("v_lshl_add_u32 v5, v3, 4, v5")
    e(f"s_add_u32 s52, s52, {QB}")
    for s in range(4): e(f"buffer_load_dwordx4 v[{48+4*s}:{51+4*s}], v5, s[32:35], s52 offen offset:{s*64}")
    e("v_lshlrev_b32 v6, 15, v4"); e("v_lshl_add_u32 v6, v3, 3, v6")
    e("s_lshl_b32 s52, s42, 10"); e("s_lshl_b32 s53, s43, 7"); e("s_add_u32 s52, s52, s53"); e("s_lshl_b32 s53, s3, 5"); e("s_add_u32 s52, s52, s53")
    e("v_cmp_gt_u32 vcc, 4, v4")
    e("v_lshlrev_b32 v62, 4, v0"); e("s_lshl_b32 s76, s2, 14"); e("s_mul_i32 s77, s2, 7168")
    for i in range(4):
        e(f"buffer_load_dwordx4 v[58:61], v62, s[64:67], s76 offen"); e(f"buffer_load_dwordx4 v[58:61], v62, s[68:71], s76 offen"); e("s_add_u32 s76, s76, 4096")
    for i in range(2):
        e(f"buffer_load_dwordx4 v[58:61], v62, s[72:75], s77 offen"); e("s_add_u32 s77, s77, 4096")
    e("s_waitcnt vmcnt(10)")
    for s in range(4):
        c="0" if s==0 else "v[20:23]"
        e(f"v_mfma_f32_16x16x32_bf16 v[20:23], v[{32+4*s}:{35+4*s}], v[{48+4*s}:{51+4*s}], {c}")
    e("s_nop 7"); e("s_nop 3")
    e("v_cvt_pk_bf16_f32 v20, v20, v21"); e("v_cvt_pk_bf16_f32 v21, v22, v23")
    e("s_and_saveexec_b64 s[60:61], vcc")
    e("buffer_store_dwordx2 v[20:21], v6, s[32:35], s52 offen")
    lab("K1B_END"); e("s_endpgm")
    L.append(desc(n,64))

KERNELS=[("k1_kernel",k1,(256,1,1),256,32768),("k1b_kernel",k1b,(256,1,1),256,0)]
try:
    import gen2
    KERNELS += gen2.more(sys.modules[__name__])
except ImportError:
    pass

def main():
    nk = int(sys.argv[2]) if len(sys.argv)>2 else len(KERNELS)
    ref=open(f"cdna_kernels/{NAME}.s.ref").read().split("\n")
    hdr=[l for l in ref if l.startswith(";") and "@launch" not in l]
    out=hdr+[f"; @launch kernel={k} grid=({g[0]},{g[1]},{g[2]}) block=({b},1,1) lds={lds}" for k,_,g,b,lds in KERNELS[:nk]]
    out+=['.amdgcn_target "amdgcn-amd-amdhsa--gfx950"',".text"]
    for k,f,*_ in KERNELS[:nk]: f()
    open(sys.argv[1],"w").write("\n".join(out+L)+"\n")
if __name__=="__main__":
    sys.modules.setdefault("gen", sys.modules[__name__])
    main()
```

```python
def more(G):
    e,lab,srd,prologue,desc,head,L = G.e,G.lab,G.srd,G.prologue,G.desc,G.head,G.L
    QP,GU,PART,STM,STL,OUTP,WS_END = G.QP,G.GU,G.PART,G.STM,G.STL,G.OUTP,G.WS_END
    def f(i): return ((i&7)<<1)|(i>>3)
    def tr_addr(dst, rowshift, t1,t2,t3):
        e(f"v_lshrrev_b32 v{t1}, 2, v4")
        e(f"v_lshl_add_u32 v{t1}, v3, 2, v{t1}")
        e(f"v_and_b32 v{t2}, 7, v{t1}"); e(f"v_lshlrev_b32 v{t2}, 1, v{t2}")
        e(f"v_lshrrev_b32 v{t3}, 3, v{t1}"); e(f"v_or_b32 v{t2}, v{t2}, v{t3}")
        e(f"v_bfe_u32 v{t3}, v4, 1, 1"); e(f"v_xor_b32 v{t2}, v{t2}, v{t3}")
        e(f"v_lshlrev_b32 v{dst}, {rowshift}, v{t1}")
        e(f"v_lshl_add_u32 v{dst}, v{t2}, 4, v{dst}")
        e(f"v_and_b32 v{t3}, 1, v4"); e(f"v_lshl_add_u32 v{dst}, v{t3}, 3, v{dst}")
    def bfly(v, tmp, addr, op):
        for k in (1,2,4,8,16,32):
            e(f"v_xor_b32 v{addr}, {k}, v1"); e(f"v_lshlrev_b32 v{addr}, 2, v{addr}")
            e(f"ds_bpermute_b32 v{tmp}, v{addr}, v{v}"); e("s_waitcnt lgkmcnt(0)")
            e(f"{op} v{v}, v{v}, v{tmp}")
    def rbf(v):
        e(f"v_cvt_pk_bf16_f32 v{v}, v{v}, v{v}"); e(f"v_lshlrev_b32 v{v}, 16, v{v}")

    def k2():
        n="k2_kernel"; head(n)
        e("s_cmp_ge_u32 s2, 256"); e("s_cbranch_scc1 K2_END")
        e("s_load_dwordx2 s[4:5], s[0:1], 8"); e("s_load_dwordx2 s[16:17], s[0:1], 104")
        prologue()
        e("s_waitcnt lgkmcnt(0)")
        srd(20,4,16777216); srd(32,16,WS_END)
        e("s_lshr_b32 s40, s2, 6"); e("s_and_b32 s41, s2, 63")
        e("s_lshl_b32 s42, s2, 16"); e("s_lshl_b32 s43, s3, 14"); e("s_add_u32 s42, s42, s43")
        for i in range(16):
            e(f"v_xor_b32 v8, {f(i)}, v1"); e("v_lshlrev_b32 v8, 4, v8")
            e(f"s_add_u32 m0, s43, {i*1024}"); e("s_nop 0")
            e("buffer_load_dwordx4 v8, s[20:23], s42 offen lds")
            e("s_add_u32 s42, s42, 1024")
        e("v_lshlrev_b32 v9, 4, v1")
        e("s_lshl_b32 s44, s40, 15"); e("s_lshl_b32 s45, s3, 13"); e("s_add_u32 s44, s44, s45")
        e("s_mul_i32 s45, s3, 8320"); e("s_add_u32 s45, s45, 0x10000")
        for i in range(8):
            e(f"s_add_u32 m0, s45, {i*1040}"); e("s_nop 0")
            e("buffer_load_dwordx4 v9, s[32:35], s44 offen lds"); e("s_add_u32 s44, s44, 1024")
        e("v_and_b32 v12, 7, v4"); e("v_lshlrev_b32 v12, 1, v12"); e("v_lshrrev_b32 v13, 3, v4"); e("v_or_b32 v12, v12, v13")
        e("v_lshlrev_b32 v13, 10, v4"); e("v_add_u32 v13, s43, v13")
        for s4 in range(4):
            e(f"v_add_u32 v14, {4*s4}, v3"); e("v_xor_b32 v14, v14, v12"); e(f"v_lshl_add_u32 v{16+s4}, v14, 4, v13")
        e("v_mul_u32_u24 v20, 1040, v4"); e("v_lshl_add_u32 v20, v3, 4, v20"); e("v_add_u32 v20, 0x10000, v20")
        for r in range(8): e(f"v_mov_b32 v{24+r}, 0")
        e("s_waitcnt vmcnt(0) lgkmcnt(0)"); e("s_barrier")
        def rs(s):
            b=96+12*(s%3)
            e(f"ds_read_b128 v[{b}:{b+3}], v{16+(s&3)} offset:{(s>>2)*256}")
            e(f"ds_read_b128 v[{b+4}:{b+7}], v20 offset:{s*64}")
            e(f"ds_read_b128 v[{b+8}:{b+11}], v20 offset:{s*64+16640}")
        rs(0); rs(1)
        for s in range(16):
            b=96+12*(s%3)
            if s+2<16: rs(s+2)
            e(f"s_waitcnt lgkmcnt({3*min(2,15-s)})")
            e(f"v_mfma_f32_16x16x32_bf16 v[24:27], v[{b}:{b+3}], v[{b+4}:{b+7}], v[24:27]")
            e(f"v_mfma_f32_16x16x32_bf16 v[28:31], v[{b}:{b+3}], v[{b+8}:{b+11}], v[28:31]")
        e("s_nop 7"); e("s_nop 3")
        e("v_mov_b32 v21, s3"); e("v_lshl_add_u32 v21, v21, 2, v3"); e("v_lshlrev_b32 v21, 2, v21")
        e("v_lshl_add_u32 v21, v4, 6, v21"); e("v_add_u32 v21, 0x18200, v21")
        e("v_lshlrev_b32 v22, 6, v4"); e("v_add_u32 v22, 0x18200, v22")
        for ht in range(2):
            a=24+4*ht
            e(f"v_max_f32 v32, v{a}, v{a+1}"); e(f"v_max3_f32 v32, v32, v{a+2}, v{a+3}")
            e(f"ds_write_b32 v21, v32 offset:{ht*1024}")
        e("s_waitcnt lgkmcnt(0)"); e("s_barrier")
        e("s_mov_b32 s46, 0x3e0293ee")
        e("s_lshr_b32 s47, s3, 1"); e("s_lshl_b32 s47, s47, 6"); e("s_and_b32 s48, s3, 1"); e("s_lshl_b32 s48, s48, 3"); e("s_add_u32 s47, s47, s48")
        e("v_mul_u32_u24 v23, 144, v4"); e("v_lshl_add_u32 v23, v3, 4, v23"); e("v_add_u32 v23, s47, v23"); e("v_add_u32 v23, 0x19200, v23")
        for ht in range(2):
            a=24+4*ht
            for k in range(4): e(f"ds_read_b128 v[{32+4*k}:{35+4*k}], v22 offset:{ht*1024+k*16}")
            e("s_waitcnt lgkmcnt(0)")
            e("v_max3_f32 v32, v32, v33, v34")
            for k in range(35,47,2): e(f"v_max3_f32 v32, v32, v{k}, v{k+1}")
            e("v_max_f32 v32, v32, v47")
            e(f"v_mul_f32 v{56+ht}, s46, v32")
            for i in range(4):
                e(f"v_fma_f32 v{a+i}, v{a+i}, s46, -v{56+ht}"); e(f"v_exp_f32 v{a+i}, v{a+i}")
            e("s_nop 0")
            e(f"v_add_f32 v33, v{a}, v{a+1}"); e(f"v_add_f32 v34, v{a+2}, v{a+3}"); e("v_add_f32 v33, v33, v34")
            e(f"ds_write_b32 v21, v33 offset:{2048+ht*1024}")
            e(f"v_cvt_pk_bf16_f32 v34, v{a}, v{a+1}"); e(f"v_cvt_pk_bf16_f32 v35, v{a+2}, v{a+3}")
            e(f"ds_write_b64 v23, v[34:35] offset:{ht*2304}")
        e("s_waitcnt lgkmcnt(0)"); e("s_barrier")
        e("s_cmp_lg_u32 s3, 0"); e("s_cbranch_scc1 K2_PV")
        e("v_cmp_gt_u32 vcc, 16, v1"); e("s_and_saveexec_b64 s[60:61], vcc")
        e("v_lshlrev_b32 v48, 10, v4")
        e("s_lshl_b32 s47, s40, 8"); e("s_lshl_b32 s48, s41, 2"); e("s_add_u32 s47, s47, s48")
        e(f"s_add_u32 s48, s47, {STM}"); e(f"s_add_u32 s49, s47, {STL}")
        for ht in range(2):
            for k in range(4): e(f"ds_read_b128 v[{32+4*k}:{35+4*k}], v22 offset:{2048+ht*1024+k*16}")
            e("s_waitcnt lgkmcnt(0)")
            for k in range(33,48): e(f"v_add_f32 v32, v32, v{k}")
            e(f"buffer_store_dword v{56+ht}, v48, s[32:35], s48 offen")
            e(f"buffer_store_dword v32, v48, s[32:35], s49 offen")
            e("s_add_u32 s48, s48, 16384"); e("s_add_u32 s49, s49, 16384")
        e("s_mov_b64 exec, s[60:61]")
        lab("K2_PV")
        e("v_mul_u32_u24 v23, 144, v4"); e("v_lshl_add_u32 v23, v3, 4, v23"); e("v_add_u32 v23, 0x19200, v23")
        for ht in range(2):
            for ks in range(2): e(f"ds_read_b128 v[{32+8*ht+4*ks}:{35+8*ht+4*ks}], v23 offset:{ht*2304+ks*64}")
        tr_addr(48,10,49,50,51)
        e("s_lshl_b32 s47, s3, 8"); e("v_add_u32 v48, s47, v48")
        e("v_mul_u32_u24 v49, 1040, v4"); e("v_lshl_add_u32 v49, v3, 3, v49"); e("v_add_u32 v49, s47, v49"); e("v_add_u32 v49, 0x10000, v49")
        for ct in range(8):
            e(f"v_xor_b32 v50, {ct*32}, v48")
            for ks in range(2):
                r=128+8*ct+4*ks
                e(f"ds_read_b64_tr_b16 v[{r}:{r+1}], v50 offset:{ks*32768}")
                e(f"ds_read_b64_tr_b16 v[{r+2}:{r+3}], v50 offset:{ks*32768+16384}")
            if ct==2: e("s_waitcnt lgkmcnt(8)")
            if ct==5: e("s_waitcnt lgkmcnt(8)")
        for ct in range(8):
            e(f"s_waitcnt lgkmcnt({min(15,4*(7-ct))})")
            for ht in range(2):
                a_=64+8*ct+4*ht; r=128+8*ct
                e(f"v_mfma_f32_16x16x32_bf16 v[{a_}:{a_+3}], v[{r}:{r+3}], v[{32+8*ht}:{35+8*ht}], 0")
                e(f"v_mfma_f32_16x16x32_bf16 v[{a_}:{a_+3}], v[{r+4}:{r+7}], v[{36+8*ht}:{39+8*ht}], v[{a_}:{a_+3}]")
        e("s_nop 7"); e("s_nop 3")
        for ct in range(8):
            for ht in range(2):
                a_=64+8*ct+4*ht
                e(f"v_cvt_pk_bf16_f32 v{a_}, v{a_}, v{a_+1}"); e(f"v_cvt_pk_bf16_f32 v{a_+1}, v{a_+2}, v{a_+3}")
                e(f"ds_write_b64 v49, v[{a_}:{a_+1}] offset:{ht*16640+ct*32}")
        e("s_waitcnt lgkmcnt(0)"); e("s_barrier")
        e("v_lshrrev_b32 v50, 6, v0"); e("v_mul_u32_u24 v51, 1040, v50"); e("v_lshl_add_u32 v51, v1, 4, v51"); e("v_add_u32 v51, 0x10000, v51")
        e("v_lshlrev_b32 v52, 18, v50"); e("v_lshrrev_b32 v53, 3, v1"); e("v_lshl_add_u32 v52, v53, 15, v52")
        e("v_and_b32 v53, 7, v1"); e("v_lshl_add_u32 v52, v53, 4, v52")
        e("s_lshl_b32 s47, s40, 13"); e("s_lshl_b32 s48, s41, 7"); e("s_add_u32 s47, s47, s48"); e(f"s_add_u32 s47, s47, {PART}")
        for i in range(8): e(f"ds_read_b128 v[{64+4*i}:{67+4*i}], v51 offset:{i*4160}")
        for i in range(8):
            e(f"s_waitcnt lgkmcnt({7-i})")
            e(f"buffer_store_dwordx4 v[{64+4*i}:{67+4*i}], v52, s[32:35], s47 offen"); e("s_add_u32 s47, s47, 0x100000")
        lab("K2_END"); e("s_endpgm")
        L.append(desc(n,192))

    CTXP=0xC00000
    def k3():
        n="k3_kernel"; head(n)
        e("s_cmp_ge_u32 s2, 256"); e("s_cbranch_scc1 K3_END")
        e("s_load_dwordx2 s[4:5], s[0:1], 32"); e("s_load_dwordx2 s[16:17], s[0:1], 104")
        prologue()
        e("s_waitcnt lgkmcnt(0)")
        srd(20,4,4194304); srd(32,16,WS_END)
        e("s_and_b32 s40, s2, 31"); e("s_lshr_b32 s41, s2, 5")
        e("s_lshl_b32 s42, s41, 19"); e("s_lshl_b32 s44, s40, 8"); e("s_add_u32 s42, s42, s44")
        e("s_lshl_b32 s44, s3, 17"); e("s_add_u32 s42, s42, s44")
        e("s_lshl_b32 s43, s3, 12")
        for i in range(4):
            e(f"v_add_u32 v8, {4*i}, v3")
            e("v_and_b32 v9, 7, v8"); e("v_lshlrev_b32 v9, 1, v9"); e("v_lshrrev_b32 v10, 3, v8"); e("v_or_b32 v9, v9, v10")
            e("v_xor_b32 v9, v9, v4"); e("v_lshlrev_b32 v9, 4, v9"); e("v_lshl_add_u32 v9, v8, 13, v9")
            e(f"s_add_u32 m0, s43, {i*1024}"); e("s_nop 0")
            e("buffer_load_dwordx4 v9, s[20:23], s42 offen lds")
        e("v_lshrrev_b32 v10, 5, v1"); e("v_lshlrev_b32 v10, 12, v10"); e("v_and_b32 v11, 31, v1"); e("v_lshl_add_u32 v10, v11, 2, v10")
        e("s_lshl_b32 s44, s40, 3"); e("s_add_u32 s44, s44, s41"); e("s_lshl_b32 s44, s44, 2"); e("s_add_u32 s44, s44, s3")
        e("s_lshl_b32 s44, s44, 13"); e(f"s_add_u32 s44, s44, {PART}")
        for j in range(32): e(f"buffer_load_dword v{64+j}, v10, s[32:35], s44 offen offset:{j*128}")
        e("v_lshlrev_b32 v12, 2, v1")
        e("s_lshl_b32 s44, s40, 10"); e("s_lshl_b32 s45, s3, 8"); e("s_add_u32 s44, s44, s45")
        e(f"s_add_u32 s45, s44, {STM}"); e(f"s_add_u32 s44, s44, {STL}")
        e("buffer_load_dword v13, v12, s[32:35], s45 offen"); e("buffer_load_dword v14, v12, s[32:35], s44 offen")
        e("s_waitcnt vmcnt(0)")
        e("v_mov_b32 v15, v13"); bfly(15,16,17,"v_max_f32")
        e("v_sub_f32 v13, v13, v15"); e("v_exp_f32 v13, v13"); e("s_nop 0")
        e("v_mul_f32 v14, v14, v13"); bfly(14,16,17,"v_add_f32")
        e("v_rcp_f32 v14, v14"); e("s_nop 0"); e("v_mul_f32 v13, v13, v14")
        e("s_lshl_b32 s44, s3, 8"); e("s_add_u32 s44, s44, 0x4000")
        e("v_add_u32 v12, s44, v12"); e("ds_write_b32 v12, v13")
        e("v_lshrrev_b32 v12, 5, v1"); e("v_lshlrev_b32 v12, 7, v12"); e("v_add_u32 v12, s44, v12")
        e("s_waitcnt lgkmcnt(0)")
        for k in range(8): e(f"ds_read_b128 v[{96+4*k}:{99+4*k}], v12 offset:{k*16}")
        e("v_mov_b32 v20, 0"); e("v_mov_b32 v21, 0")
        e("s_waitcnt lgkmcnt(0)")
        for j in range(32):
            e(f"v_lshlrev_b32 v22, 16, v{64+j}"); e(f"v_and_b32 v23, 0xffff0000, v{64+j}")
            e(f"v_fmac_f32 v20, v22, v{96+j}"); e(f"v_fmac_f32 v21, v23, v{96+j}")
        e("v_xor_b32 v17, 32, v1"); e("v_lshlrev_b32 v17, 2, v17")
        e("ds_bpermute_b32 v22, v17, v20"); e("ds_bpermute_b32 v23, v17, v21"); e("s_waitcnt lgkmcnt(0)")
        e("v_add_f32 v20, v20, v22"); e("v_add_f32 v21, v21, v23")
        e("v_cvt_pk_bf16_f32 v20, v20, v21")
        e("v_and_b32 v11, 31, v1")
        e("v_lshrrev_b32 v12, 4, v11"); e("v_lshlrev_b32 v12, 6, v12")
        e("v_bfe_u32 v13, v11, 1, 2"); e("v_lshl_add_u32 v12, v13, 4, v12")
        e("v_bfe_u32 v13, v11, 3, 1"); e("v_lshl_add_u32 v12, v13, 3, v12")
        e("v_and_b32 v13, 1, v11"); e("v_lshl_add_u32 v12, v13, 2, v12")
        e("s_lshl_b32 s44, s3, 7"); e("s_add_u32 s44, s44, 0x4400"); e("v_add_u32 v12, s44, v12")
        e("ds_write_b32 v12, v20")
        e("s_waitcnt vmcnt(0) lgkmcnt(0)"); e("s_barrier")
        e("v_and_b32 v12, 3, v4"); e("v_lshlrev_b32 v12, 7, v12"); e("v_lshl_add_u32 v12, v3, 4, v12"); e("v_add_u32 v12, 0x4400, v12")
        e("ds_read_b128 v[24:27], v12"); e("ds_read_b128 v[28:31], v12 offset:64")
        tr_addr(13,8,14,15,16)
        e("s_lshl_b32 s44, s3, 6"); e("v_xor_b32 v13, s44, v13")
        e("v_lshlrev_b32 v14, 2, v1")
        e("s_lshl_b32 s44, s41, 16"); e("s_lshl_b32 s45, s40, 9"); e("s_add_u32 s44, s44, s45"); e("s_lshl_b32 s45, s3, 7"); e("s_add_u32 s44, s44, s45"); e(f"s_add_u32 s44, s44, {CTXP}")
        for u in range(2):
            e(f"v_xor_b32 v16, {u*32}, v13")
            for ks in range(2):
                e(f"ds_read_b64_tr_b16 v[{32+4*ks}:{33+4*ks}], v16 offset:{ks*8192}")
                e(f"ds_read_b64_tr_b16 v[{34+4*ks}:{35+4*ks}], v16 offset:{ks*8192+4096}")
            e("s_waitcnt lgkmcnt(0)")
            a=40+4*u
            e(f"v_mfma_f32_16x16x32_bf16 v[{a}:{a+3}], v[24:27], v[32:35], 0")
            e(f"v_mfma_f32_16x16x32_bf16 v[{a}:{a+3}], v[28:31], v[36:39], v[{a}:{a+3}]")
        e("s_nop 7"); e("s_nop 3")
        e("v_cmp_gt_u32 vcc, 16, v1"); e("s_and_saveexec_b64 s[60:61], vcc")
        for i in range(4):
            for u in range(2):
                e(f"buffer_store_dword v{40+4*u+i}, v14, s[32:35], s44 offen offset:{u*64}")
            e("s_add_u32 s44, s44, 16384")
        lab("K3_END"); e("s_endpgm")
        L.append(desc(n,128))

    def k3b():
        n="k3b_kernel"; head(n)
        e("s_cmp_ge_u32 s2, 184"); e("s_cbranch_scc1 K3B_END")
        e("s_load_dwordx2 s[6:7], s[0:1], 40"); e("s_load_dwordx2 s[8:9], s[0:1], 72"); e("s_load_dwordx2 s[16:17], s[0:1], 104")
        prologue()
        e("s_waitcnt lgkmcnt(0)")
        srd(32,16,WS_END)
        e("s_sub_u32 s42, s2, 128"); e("s_mov_b32 s11, 4194304")
        e("s_cmp_ge_u32 s2, 128")
        e("s_cselect_b32 s6, s8, s6"); e("s_cselect_b32 s7, s9, s7")
        e("s_cselect_b32 s10, 1835008, s11"); e("s_cselect_b32 s40, s42, s2")
        e("s_mov_b32 s24, s6"); e("s_and_b32 s25, s7, 0xffff"); e("s_mov_b32 s26, s10"); e("s_mov_b32 s27, 0x00020000")
        e("s_lshl_b32 s42, s40, 15"); e("s_lshl_b32 s43, s3, 13"); e("s_add_u32 s42, s42, s43")
        e("s_and_b32 s44, s3, 1"); e("v_xor_b32 v7, s44, v1")
        for i in range(8):
            e(f"v_xor_b32 v8, {f(i)}, v7"); e("v_lshlrev_b32 v8, 4, v8")
            e(f"s_add_u32 m0, s43, {i*1024}"); e("s_nop 0")
            e("buffer_load_dwordx4 v8, s[24:27], s42 offen lds"); e("s_add_u32 s42, s42, 1024")
        e("v_bfe_u32 v9, v0, 5, 2"); e("v_and_b32 v10, 31, v0")
        e("v_bfe_u32 v12, v10, 2, 2"); e("v_lshlrev_b32 v12, 4, v12")
        e("v_bfe_u32 v13, v10, 4, 1"); e("v_lshl_add_u32 v12, v13, 3, v12")
        e("v_and_b32 v13, 3, v10"); e("v_lshl_add_u32 v12, v13, 1, v12")
        e("v_lshl_add_u32 v12, v9, 6, v12"); e("v_add_u32 v12, 0x8000, v12")
        e("s_cmp_ge_u32 s2, 128"); e("s_cbranch_scc1 K3B_MLP")
        e("v_lshlrev_b32 v11, 14, v9"); e("v_lshl_add_u32 v11, v10, 2, v11")
        e("s_lshl_b32 s44, s2, 7"); e(f"s_add_u32 s44, s44, {CTXP}")
        for c in range(8):
            e(f"buffer_load_dword v{20+c}, v11, s[32:35], s44 offen"); e("s_add_u32 s44, s44, 65536")
        e("s_waitcnt vmcnt(0)")
        for c in range(1,8): e(f"v_add_f32 v20, v20, v{20+c}")
        e("s_branch K3B_W")
        lab("K3B_MLP")
        e("v_mul_u32_u24 v11, 7168, v9"); e("v_lshl_add_u32 v11, v10, 2, v11")
        e("s_lshl_b32 s44, s40, 7"); e(f"s_add_u32 s44, s44, {GU}"); e("s_add_u32 s45, s44, 28672")
        e("buffer_load_dword v20, v11, s[32:35], s44 offen"); e("buffer_load_dword v21, v11, s[32:35], s45 offen")
        e("s_waitcnt vmcnt(0)")
        rbf(20); rbf(21); e("v_max_f32 v20, 0, v20"); e("v_mul_f32 v20, v20, v21")
        lab("K3B_W")
        e("v_cvt_pk_bf16_f32 v20, v20, v20"); e("ds_write_b16 v12, v20")
        e("s_waitcnt vmcnt(0) lgkmcnt(0)"); e("s_barrier")
        e("v_and_b32 v12, 3, v4"); e("v_lshlrev_b32 v12, 6, v12"); e("v_lshl_add_u32 v12, v3, 4, v12"); e("v_add_u32 v12, 0x8000, v12")
        e("ds_read_b128 v[24:27], v12")
        tr_addr(13,10,14,15,16)
        e("s_lshl_b32 s44, s3, 8"); e("v_add_u32 v13, s44, v13")
        e("v_lshlrev_b32 v18, 2, v1")
        e("s_lshl_b32 s45, s2, 13"); e("s_lshl_b32 s46, s3, 9"); e("s_add_u32 s45, s45, s46"); e(f"s_add_u32 s45, s45, {OUTP}")
        e("v_cmp_gt_u32 vcc, 16, v1")
        for nt in range(8):
            e(f"v_xor_b32 v16, {nt*32}, v13")
            e(f"ds_read_b64_tr_b16 v[{32+4*nt}:{33+4*nt}], v16")
            e(f"ds_read_b64_tr_b16 v[{34+4*nt}:{35+4*nt}], v16 offset:16384")
        e("s_waitcnt lgkmcnt(0)")
        for nt in range(8):
            e(f"v_mfma_f32_16x16x32_bf16 v[{64+4*nt}:{67+4*nt}], v[24:27], v[{32+4*nt}:{35+4*nt}], 0")
        e("s_nop 7"); e("s_nop 3")
        e("s_and_saveexec_b64 s[60:61], vcc")
        for i in range(4):
            for nt in range(8): e(f"buffer_store_dword v{64+4*nt+i}, v18, s[32:35], s45 offen offset:{nt*64}")
            e("s_add_u32 s45, s45, 2048")
        lab("K3B_END"); e("s_endpgm")
        L.append(desc(n,96))

    def k4():
        n="k4_kernel"; head(n)
        e("s_cmp_ge_u32 s2, 64"); e("s_cbranch_scc1 K4_END")
        e("s_load_dwordx2 s[4:5], s[0:1], 0"); e("s_load_dwordx4 s[8:11], s[0:1], 80"); e("s_load_dwordx2 s[16:17], s[0:1], 104")
        prologue()
        e("s_waitcnt lgkmcnt(0)")
        srd(20,4,4096); srd(24,8,1024); srd(28,10,4096); srd(32,16,WS_END)
        e("s_lshr_b32 s40, s2, 4")
        e("v_and_b32 v7, 31, v1"); e("v_lshrrev_b32 v8, 5, v0"); e("v_lshlrev_b32 v8, 13, v8"); e("v_lshl_add_u32 v8, v7, 2, v8")
        e("s_lshl_b32 s42, s2, 7"); e(f"s_add_u32 s42, s42, {OUTP}")
        for i in range(23):
            e(f"buffer_load_dword v{32+i}, v8, s[32:35], s42 offen"); e("s_add_u32 s42, s42, 65536")
        e("v_lshlrev_b32 v9, 4, v1"); e("s_lshl_b32 s43, s40, 10")
        e("buffer_load_dwordx4 v[12:15], v9, s[20:23], s43 offen"); e("buffer_load_dwordx4 v[16:19], v9, s[24:27], 0 offen")
        e("s_waitcnt vmcnt(2)")
        for i in range(1,16): e(f"v_add_f32 v32, v32, v{32+i}")
        for i in range(49,55): e(f"v_add_f32 v48, v48, v{i}")
        e("v_lshlrev_b32 v10, 2, v0"); e("ds_write_b32 v10, v32"); e("ds_write_b32 v10, v48 offset:1024")
        e("s_waitcnt vmcnt(0) lgkmcnt(0)"); e("s_barrier")
        e("s_cmp_lg_u32 s3, 0"); e("s_cbranch_scc1 K4_END")
        e("v_mov_b32 v20, 0")
        for r in range(4):
            e(f"v_lshlrev_b32 v21, 16, v{12+r}"); e(f"v_lshlrev_b32 v22, 16, v{16+r}"); e("v_mul_f32 v21, v21, v22"); rbf(21); e("v_add_f32 v20, v20, v21")
            e(f"v_and_b32 v21, 0xffff0000, v{12+r}"); e(f"v_and_b32 v22, 0xffff0000, v{16+r}"); e("v_mul_f32 v21, v21, v22"); rbf(21); e("v_add_f32 v20, v20, v21")
        bfly(20,21,22,"v_add_f32")
        rbf(20)
        e("v_mul_f32 v20, 0xbfb8aa3b, v20"); e("v_exp_f32 v20, v20"); e("s_nop 0"); e("v_add_f32 v20, 1.0, v20"); e("v_rcp_f32 v20, v20"); e("s_nop 0")
        rbf(20)
        e("v_sub_f32 v21, 1.0, v20"); rbf(21)
        e("v_lshlrev_b32 v8, 2, v7")
        for k in range(8):
            e(f"ds_read_b32 v{24+k}, v8 offset:{k*128}"); e(f"ds_read_b32 v{56+k}, v8 offset:{1024+k*128}")
        e("s_waitcnt lgkmcnt(0)")
        for k in range(1,8):
            e(f"v_add_f32 v24, v24, v{24+k}"); e(f"v_add_f32 v56, v56, v{56+k}")
        rbf(24); rbf(56)
        e("v_mul_f32 v24, v20, v24"); rbf(24); e("v_mul_f32 v56, v21, v56"); rbf(56)
        e("v_add_f32 v24, v24, v56"); e("v_cvt_pk_bf16_f32 v24, v24, v24")
        e("v_lshlrev_b32 v9, 1, v7"); e("s_lshl_b32 s42, s2, 6")
        e("v_cmp_gt_u32 vcc, 32, v1"); e("s_and_saveexec_b64 s[60:61], vcc")
        e("buffer_store_short v24, v9, s[28:31], s42 offen")
        lab("K4_END"); e("s_endpgm")
        L.append(desc(n,64))
    return [("k2_kernel",k2,(256,1,1),256,107520),("k3_kernel",k3,(256,1,1),256,18432),("k3b_kernel",k3b,(184,1,1),256,33024),("k4_kernel",k4,(64,1,1),256,2048)]
```

```python
import sys
NAME = "gated_mix__compressed_kv_cla__glu_gated_reglu__decode"
QP=0; GU=0x80000; PART=0x100000; STM=0xA00000; STL=0xA08000; OUTP=0xA20000; WS_END=0xD00000
L=[]
def e(s): L.append("    "+s)
def lab(s): L.append(s+":")

def srd(d, ptr, size):
    e(f"s_mov_b32 s{d}, s{ptr}"); e(f"s_and_b32 s{d+1}, s{ptr+1}, 0xffff")
    e(f"s_mov_b32 s{d+2}, {size}"); e(f"s_mov_b32 s{d+3}, 0x00020000")

def prologue():
    e("v_and_b32 v1, 63, v0")
    e("v_lshrrev_b32 v2, 6, v0")
    e("s_nop 0")
    e("v_readfirstlane_b32 s3, v2")
    e("v_lshrrev_b32 v3, 4, v1")
    e("v_and_b32 v4, 15, v1")

def desc(name, vg, sg=96):
    vg=(vg+3)//4*4
    return f""".section .rodata,"a"
.p2align 6
.amdhsa_kernel {name}
  .amdhsa_next_free_vgpr {vg}
  .amdhsa_next_free_sgpr {sg}
  .amdhsa_accum_offset {vg}
  .amdhsa_group_segment_fixed_size 0
  .amdhsa_kernarg_size 112
  .amdhsa_user_sgpr_count 2
  .amdhsa_user_sgpr_kernarg_segment_ptr 1
  .amdhsa_system_sgpr_workgroup_id_x 1
.end_amdhsa_kernel
.text"""
def head(name):
    L.append(f".globl {name}\n.p2align 8\n.type {name},@function\n{name}:")

QB=0x40000
QPB=0
CTXP=0xA10000
def k1():
    n="k1_kernel"; head(n)
    e("s_cmp_ge_u32 s2, 256"); e("s_cbranch_scc1 K1_END")
    e("s_load_dwordx4 s[4:7], s[0:1], 0"); e("s_load_dwordx2 s[8:9], s[0:1], 16")
    e("s_load_dwordx4 s[12:15], s[0:1], 56"); e("s_load_dwordx2 s[16:17], s[0:1], 104")
    prologue()
    e("s_waitcnt lgkmcnt(0)")
    srd(20,4,4096); srd(32,16,WS_END); srd(64,6,16777216)
    e("v_lshlrev_b32 v62, 4, v0"); e("s_lshl_b32 s70, s2, 16")
    e("s_cmp_lt_u32 s2, 240"); e("s_cbranch_scc1 K1_WORK")
    for i in range(0): e(f"buffer_load_dwordx4 v[58:61], v62, s[64:67], s70 offen"); e("s_add_u32 s70, s70, 4096")
    e("s_branch K1_END")
    lab("K1_WORK")
    e("s_cmp_ge_u32 s2, 128"); e("s_cbranch_scc1 K1_MLP")
    srd(24,8,4194304)
    e("s_movk_i32 s40, 8192")
    e("s_and_b32 s42, s2, 31"); e("s_lshr_b32 s43, s2, 5")
    e("s_lshl_b32 s41, s42, 8"); e("s_lshl_b32 s44, s43, 6"); e("s_add_u32 s41, s41, s44")
    e("s_branch K1_GO")
    lab("K1_MLP")
    e("s_sub_u32 s44, s2, 128")
    e("s_cmp_ge_u32 s44, 56"); e("s_cselect_b32 s45, 1, 0")
    e("s_cselect_b32 s46, 56, 0"); e("s_cselect_b32 s8, s14, s12"); e("s_cselect_b32 s9, s15, s13")
    e("s_sub_u32 s44, s44, s46")
    srd(24,8,1835008)
    e("s_movk_i32 s40, 3584"); e("s_lshl_b32 s41, s44, 6")
    lab("K1_GO")
    e("v_lshrrev_b32 v5, 2, v1"); e("v_and_b32 v6, 3, v1")
    e("v_lshrrev_b32 v7, 3, v5"); e("v_lshlrev_b32 v7, 1, v7"); e("v_xor_b32 v6, v6, v7")
    e("v_mul_lo_u32 v8, v5, s40"); e("v_lshl_add_u32 v8, v6, 4, v8"); e("v_add_u32 v8, s41, v8")
    e("s_lshl_b32 s48, s40, 4"); e("s_lshl_b32 s49, s3, 3"); e("s_mul_i32 s49, s49, s48")
    e("s_lshl_b32 s50, s3, 13")
    for i in range(8):
        e(f"s_add_u32 m0, s50, {i*1024}"); e("s_nop 0")
        e("buffer_load_dwordx4 v8, s[24:27], s49 offen lds"); e("s_add_u32 s49, s49, s48")
    e("v_and_b32 v10, 3, v1"); e("v_lshlrev_b32 v10, 10, v10"); e("v_lshl_add_u32 v10, v3, 4, v10")
    for s in range(16):
        e(f"buffer_load_dwordx4 v[{64+4*s}:{67+4*s}], v10, s[20:23], 0 offen offset:{s*64}")
    for i in range(0): e(f"buffer_load_dwordx4 v[58:61], v62, s[64:67], s70 offen"); e("s_add_u32 s70, s70, 4096")
    e("v_lshrrev_b32 v12, 2, v4"); e("v_and_b32 v13, 3, v4")
    e("v_lshl_add_u32 v14, v3, 3, v12"); e("v_lshlrev_b32 v15, 6, v14")
    e("v_lshrrev_b32 v16, 1, v13"); e("s_and_b32 s51, s3, 1"); e("v_mov_b32 v17, s51"); e("v_lshl_add_u32 v16, v17, 1, v16")
    e("v_and_b32 v18, 1, v3"); e("v_lshlrev_b32 v18, 1, v18"); e("v_xor_b32 v16, v16, v18")
    e("v_lshl_add_u32 v15, v16, 4, v15"); e("v_and_b32 v13, 1, v13"); e("v_lshl_add_u32 v15, v13, 3, v15")
    for r in range(4): e(f"v_mov_b32 v{20+r}, 0")
    e("s_waitcnt vmcnt(0)"); e("s_barrier")
    e("s_cmp_ge_u32 s3, 2"); e("s_cbranch_scc1 K1_END")
    def rd(s):
        b=24+4*(s&3)
        e(f"ds_read_b64_tr_b16 v[{b}:{b+1}], v15 offset:{s*2048}")
        e(f"ds_read_b64_tr_b16 v[{b+2}:{b+3}], v15 offset:{s*2048+256}")
    rd(0); rd(1); rd(2)
    for s in range(16):
        b=24+4*(s&3)
        if s+3<16: rd(s+3)
        e(f"s_waitcnt lgkmcnt({2*min(3,15-s)})")
        e(f"v_mfma_f32_16x16x32_bf16 v[20:23], v[{64+4*s}:{67+4*s}], v[{b}:{b+3}], v[20:23]")
    e("s_nop 7"); e("s_nop 3")
    e("v_cmp_gt_u32 vcc, 16, v1"); e("s_and_saveexec_b64 s[60:61], vcc")
    e("s_cmp_ge_u32 s2, 128"); e("s_cbranch_scc0 K1_Q")
    e("s_mul_i32 s52, s45, 28672"); e("s_lshl_b32 s53, s41, 1"); e("s_add_u32 s52, s52, s53")
    e("s_lshl_b32 s53, s3, 6"); e("s_add_u32 s52, s52, s53"); e(f"s_add_u32 s52, s52, {GU}")
    e("v_lshlrev_b32 v5, 2, v1")
    for i in range(4):
        e(f"buffer_store_dword v{20+i}, v5, s[32:35], s52 offen"); e("s_add_u32 s52, s52, 7168")
    e("s_branch K1_END")
    lab("K1_Q")
    e("s_lshl_b32 s53, s3, 5"); e("s_add_u32 s52, s41, s53"); e(f"s_add_u32 s52, s52, {QB}")
    e("v_lshlrev_b32 v5, 1, v1")
    for i in range(4):
        e(f"v_cvt_pk_bf16_f32 v{20+i}, v{20+i}, v{20+i}")
        e(f"buffer_store_short v{20+i}, v5, s[32:35], s52 offen"); e("s_add_u32 s52, s52, 8192")
    lab("K1_END"); e("s_endpgm")
    L.append(desc(n,128))
def k1b():
    n="k1b_kernel"; head(n)
    e("s_cmp_ge_u32 s2, 256"); e("s_cbranch_scc1 K1B_END")
    e("s_load_dwordx2 s[8:9], s[0:1], 24"); e("s_load_dwordx2 s[16:17], s[0:1], 104")
    e("s_load_dwordx4 s[4:7], s[0:1], 32"); e("s_load_dwordx2 s[10:11], s[0:1], 72")
    prologue()
    e("s_waitcnt lgkmcnt(0)")
    srd(28,8,4194304); srd(32,16,WS_END); srd(64,4,4194304); srd(68,6,4194304); srd(72,10,1835008)
    e("s_and_b32 s42, s2, 31"); e("s_lshr_b32 s43, s2, 5")
    e("v_lshlrev_b32 v11, 13, v4"); e("v_lshl_add_u32 v11, v3, 4, v11")
    e("s_lshl_b32 s51, s43, 19"); e("s_lshl_b32 s52, s3, 17"); e("s_add_u32 s51, s51, s52"); e("s_lshl_b32 s52, s42, 8"); e("s_add_u32 s51, s51, s52")
    for s in range(4): e(f"buffer_load_dwordx4 v[{32+4*s}:{35+4*s}], v11, s[28:31], s51 offen offset:{s*64}")
    e("v_and_b32 v5, 3, v1"); e("v_lshlrev_b32 v5, 13, v5"); e("v_lshl_add_u32 v5, v3, 4, v5")
    e(f"s_add_u32 s52, s52, {QB}")
    for s in range(4): e(f"buffer_load_dwordx4 v[{48+4*s}:{51+4*s}], v5, s[32:35], s52 offen offset:{s*64}")
    e("v_lshlrev_b32 v6, 15, v4"); e("v_lshl_add_u32 v6, v3, 3, v6")
    e("s_lshl_b32 s52, s42, 10"); e("s_lshl_b32 s53, s43, 7"); e("s_add_u32 s52, s52, s53"); e("s_lshl_b32 s53, s3, 5"); e("s_add_u32 s52, s52, s53")
    e("v_cmp_gt_u32 vcc, 4, v4")
    e("v_lshlrev_b32 v62, 4, v0"); e("s_lshl_b32 s76, s2, 14"); e("s_mul_i32 s77, s2, 7168")
    for i in range(0):
        e(f"buffer_load_dwordx4 v[58:61], v62, s[64:67], s76 offen"); e(f"buffer_load_dwordx4 v[58:61], v62, s[68:71], s76 offen"); e("s_add_u32 s76, s76, 4096")
    for i in range(0):
        e(f"buffer_load_dwordx4 v[58:61], v62, s[72:75], s77 offen"); e("s_add_u32 s77, s77, 4096")
    e("s_waitcnt vmcnt(0)")
    for s in range(4):
        c="0" if s==0 else "v[20:23]"
        e(f"v_mfma_f32_16x16x32_bf16 v[20:23], v[{32+4*s}:{35+4*s}], v[{48+4*s}:{51+4*s}], {c}")
    e("s_nop 7"); e("s_nop 3")
    e("v_cvt_pk_bf16_f32 v20, v20, v21"); e("v_cvt_pk_bf16_f32 v21, v22, v23")
    e("s_and_saveexec_b64 s[60:61], vcc")
    e("buffer_store_dwordx2 v[20:21], v6, s[32:35], s52 offen")
    lab("K1B_END"); e("s_endpgm")
    L.append(desc(n,64))

KERNELS=[("k1_kernel",k1,(256,1,1),256,32768),("k1b_kernel",k1b,(256,1,1),256,0)]
try:
    import gen2
    KERNELS += gen2.more(sys.modules[__name__])
except ImportError:
    pass

def main():
    nk = int(sys.argv[2]) if len(sys.argv)>2 else len(KERNELS)
    ref=open(f"cdna_kernels/{NAME}.s.ref").read().split("\n")
    hdr=[l for l in ref if l.startswith(";") and "@launch" not in l]
    out=hdr+[f"; @launch kernel={k} grid=({g[0]},{g[1]},{g[2]}) block=({b},1,1) lds={lds}" for k,_,g,b,lds in KERNELS[:nk]]
    out+=['.amdgcn_target "amdgcn-amd-amdhsa--gfx950"',".text"]
    for k,f,*_ in KERNELS[:nk]: f()
    open(sys.argv[1],"w").write("\n".join(out+L)+"\n")
if __name__=="__main__":
    sys.modules.setdefault("gen", sys.modules[__name__])
    main()
```
